```python
import torch

def _softmax(x, axis=-1):
    return torch.softmax(x, dim=axis)

def _gelu(x):
    return torch.nn.functional.gelu(x, approximate='tanh')

def _silu(x):
    return torch.nn.functional.silu(x)

def _sigmoid(x):
    return torch.sigmoid(x)

def _layernorm(x, axis=-1, eps=1e-05):
    m = x.mean(dim=axis, keepdim=True)
    v = x.var(dim=axis, keepdim=True, unbiased=False)
    return (x - m) / torch.sqrt(v + eps)

def _scatter_add(tgt, idx, src, axis=0):
    return tgt.clone().index_add_(axis, idx, src)

def _segment_sum(src, seg, n):
    out = torch.zeros((n,) + src.shape[1:], dtype=src.dtype)
    return out.index_add_(0, seg, src)

def _pad(x, pw):
    flat = tuple((v for pair in reversed(pw) for v in pair))
    return torch.nn.functional.pad(x, flat)
kernel_name = 'adaLN_cond__ssm_conv_h3__moe_arch_mod__prompt'

def setup_inputs():

    _w = lambda a: (lambda t: t.to(torch.bfloat16) if t.is_floating_point() else t)(torch.as_tensor(a))

    def _A_setup():
        B, S, D = (1, 2048, 640)
        ks = 4
        return {'q': _w((lambda *s: torch.randn(*s, dtype=torch.bfloat16) * 0.05)(B, S, D)), 'k': _w((lambda *s: torch.randn(*s, dtype=torch.bfloat16) * 0.4)(B, S, D)), 'v': _w((lambda *s: torch.randn(*s, dtype=torch.bfloat16) * 0.4)(B, S, D)), 'shift_k': _w((lambda *s: torch.randn(*s, dtype=torch.bfloat16) * 0.4)(D, ks) * 0.5), 'ssm_k': _w((lambda *s: torch.randn(*s, dtype=torch.bfloat16) * 0.8)(D, S) * (1.0 / S ** 0.5)), 'ssm_D': _w((lambda *s: torch.randn(*s, dtype=torch.bfloat16) * 0.4)(D))}
    _A_in = _A_setup()

    def _B_setup():
        B, S, D, F, C = (1, 2048, 640, 1728, 1)
        return {'x': _w((lambda *s: torch.randn(*s, dtype=torch.bfloat16) * 0.05)(B, S, D)), 'w_r': _w((lambda *s: torch.randn(*s, dtype=torch.bfloat16) * 0.05)(D)), 'w_gate': _w((lambda *s: torch.randn(*s, dtype=torch.bfloat16) * 0.05)(D, F)), 'w_up': _w((lambda *s: torch.randn(*s, dtype=torch.bfloat16) * 0.05)(D, F)), 'w_down': _w((lambda *s: torch.randn(*s, dtype=torch.bfloat16) * 0.05)(F, D))}
    _B_in = _B_setup()
    return {'A_q': _A_in['q'], 'A_k': _A_in['k'], 'A_v': _A_in['v'], 'A_shift_k': _A_in['shift_k'], 'A_ssm_k': _A_in['ssm_k'], 'A_ssm_D': _A_in['ssm_D'], 'B_x': _B_in['x'], 'B_w_r': _B_in['w_r'], 'B_w_gate': _B_in['w_gate'], 'B_w_up': _B_in['w_up'], 'B_w_down': _B_in['w_down'], 'c': _w((lambda *s: torch.randn(*s, dtype=torch.bfloat16) * 0.2)(1, 640) * 8.0), 'w_mod': _w((lambda *s: torch.randn(*s, dtype=torch.bfloat16) * 0.2)(640, 6 * 640) * 640 ** (-0.5) * 8.0)}

def reference(A_q, A_k, A_v, A_shift_k, A_ssm_k, A_ssm_D, B_x, B_w_r, B_w_gate, B_w_up, B_w_down, c, w_mod):

    def _A_ref(q, k, v, shift_k, ssm_k, ssm_D):
        B, S, D = q.shape
        ks = shift_k.shape[-1]
        k_pad = _pad(k, ((0, 0), (ks - 1, 0), (0, 0)))
        k_shift = torch.zeros_like(k)
        for t in range(ks):
            k_shift = k_shift + k_pad[:, t:t + S, :] * shift_k[:, ks - 1 - t][None, None, :]
        kv = k_shift * v
        L = 2 * S
        kv_pad = _pad(kv, ((0, 0), (0, S), (0, 0)))
        kf_pad = _pad(ssm_k, ((0, 0), (0, S)))
        kv_f = (lambda x, axes=(-2, -1): torch.fft.rfft2(x.float(), dim=axes))(kv_pad[:, None, :, :], axes=(1, 2))
        kf_f = (lambda x, axes=(-2, -1): torch.fft.rfft2(x.float(), dim=axes))(kf_pad[:, None, :], axes=(1, 2))
        kf_f = (lambda x, *d: x.permute(*d))(kf_f, 1, 2, 0)
        y_f = kv_f * kf_f[None, :, :, :]
        y = (lambda x, s, axes=(-2, -1): torch.fft.irfft2(x, s=s, dim=axes).to(torch.bfloat16))(y_f, (1, L), axes=(1, 2))[:, 0, :S, :]
        y = y + kv * ssm_D[None, None, :]
        return q * y

    def _B_ref(x, w_r, w_gate, w_up, w_down):
        B, S, D = x.shape
        C = 1
        r = x @ w_r
        idx = torch.argsort(-r, axis=-1)[:, :C]
        idx_e = (lambda x, n, axis: torch.repeat_interleave(x, n, dim=axis))(idx.reshape(B, C, 1), D, axis=2)
        x_sel = (lambda x, i, axis: torch.take_along_dim(x, i, dim=axis))(x, idx_e, axis=1)
        g = _silu(x_sel @ w_gate)
        u = x_sel @ w_up
        y = g * u @ w_down
        r_sel = _sigmoid((lambda x, i, axis: torch.take_along_dim(x, i, dim=axis))(r, idx, axis=1))
        y = y * r_sel.reshape(B, C, 1)
        b_off = (torch.arange(B) * S).reshape(B, 1)
        flat_idx = (idx + b_off).reshape(B * C)
        zero = (x * 0.0).reshape(B * S, D)
        upd = _scatter_add(zero, flat_idx, y.reshape(B * C, D), axis=0)
        return x + upd.reshape(B, S, D)
    x = A_q
    mod = (_silu(c) @ w_mod).reshape(c.shape[0], 6, 1, -1)
    sa, ca, ga, sb, cb, gb = (mod[:, 0].clone(), mod[:, 1].clone(), mod[:, 2].clone(), mod[:, 3].clone(), mod[:, 4].clone(), mod[:, 5].clone())
    h = _layernorm(x, axis=-1) * (1 + ca) + sa
    x = x + ga * _A_ref(h, A_k, A_v, A_shift_k, A_ssm_k, A_ssm_D)
    h = _layernorm(x, axis=-1) * (1 + cb) + sb
    x = x + gb * _B_ref(h, B_w_r, B_w_gate, B_w_up, B_w_down)
    return x
```

```python
import re

class Asm:
    def __init__(self):
        self.lines = []
        self.vm_n = 0
        self.lg_n = 0
        self.uid = 0
    def __call__(self, s):
        for ln in s.strip().split('\n'):
            ln = ln.strip()
            if ln:
                self.lines.append(ln)
    def label(self, name):
        self.lines.append(name + ':')
    def newlabel(self, base):
        self.uid += 1
        return f'L_{base}_{self.uid}'
    def vm(self, s):
        self(s); self.vm_n += 1
        return self.vm_n
    def lg(self, s):
        self(s); self.lg_n += 1
        return self.lg_n
    def wait(self, vm=None, lg=None):
        parts = []
        if vm is not None:
            n = self.vm_n - vm
            assert 0 <= n, n
            parts.append(f'vmcnt({min(n,63)})')
        if lg is not None:
            n = self.lg_n - lg
            assert 0 <= n, n
            parts.append(f'lgkmcnt({min(n,15)})')
        self('s_waitcnt ' + ' '.join(parts))
    def wait0(self, vm=False, lg=False):
        parts = []
        if vm: parts.append('vmcnt(0)')
        if lg: parts.append('lgkmcnt(0)')
        self('s_waitcnt ' + ' '.join(parts))
    def nop(self, n):
        while n > 0:
            k = min(n, 16)
            self(f's_nop {k-1}')
            n -= k
    def text(self):
        out = []
        for ln in self.lines:
            out.append(ln if ln.endswith(':') else '    ' + ln)
        return '\n'.join(out) + '\n'

def v(a, n=1):
    return f'v{a}' if n == 1 else f'v[{a}:{a+n-1}]'
def a_(a, n=1):
    return f'a{a}' if n == 1 else f'a[{a}:{a+n-1}]'
def s(a, n=1):
    return f's{a}' if n == 1 else f's[{a}:{a+n-1}]'

_R = re.compile(r'^-?\|?(?:abs\()?([vas])(\d+)\)?\|?$')
_RR = re.compile(r'^-?([vas])\[(\d+):(\d+)\]$')
def regs(tok):
    tok = tok.strip()
    m = _R.match(tok)
    if m: return {(m.group(1), int(m.group(2)))}
    m = _RR.match(tok)
    if m: return {(m.group(1), i) for i in range(int(m.group(2)), int(m.group(3)) + 1)}
    if tok == 'vcc': return {('s', 'vcc')}
    if tok in ('vcc_lo', 'vcc_hi'): return {('s', 'vcc')}
    if tok in ('exec', 'exec_lo', 'exec_hi'): return {('s', 'exec')}
    if tok == 'm0': return {('s', 'm0')}
    return set()

TRANS = ('v_exp_f32', 'v_log_f32', 'v_rcp_f32', 'v_rsq_f32', 'v_sqrt_f32', 'v_sin_f32', 'v_cos_f32')

class Ins:
    def __init__(self, text):
        self.text = text
        t = text.split(';')[0].strip()
        sp = t.split(None, 1)
        self.op = op = sp[0]
        rest = sp[1] if len(sp) > 1 else ''
        ops = [x.strip() for x in re.split(r',(?![^\[]*\])', rest)] if rest else []
        mods = ''
        if ops:
            last = ops[-1].split(None, 1)
            ops[-1] = last[0]
            mods = last[1] if len(last) > 1 else ''
        self.ops, self.mods = ops, mods
        self.w, self.r = set(), set()
        self.kind = 'other'
        self.dpp = 'row_' in mods or 'wave_' in mods or 'quad_perm' in mods
        R = [regs(o) for o in ops]
        allr = lambda xs: set().union(*xs) if xs else set()
        if op.startswith('v_mfma'):
            self.kind = 'mfma'; self.w = R[0]; self.r = allr(R[1:]); self.ab = R[1] | R[2]; self.c = R[3]
            self.passes = 4 if '16x16x32' in op else 8
        elif op.startswith('v_'):
            self.kind = 'valu'
            self.w = set(R[0]); self.r = allr(R[1:])
            if 'permlane' in op and 'swap' in op:
                self.w = R[0] | R[1]; self.r = R[0] | R[1]
            if op.startswith(('v_fmac', 'v_dot2c', 'v_pk_fmac', 'v_writelane')) or self.dpp:
                self.r |= R[0]
            if op.startswith(('v_add_co', 'v_sub_co', 'v_addc_co', 'v_subb_co')):
                self.w |= R[1]; self.r = allr(R[2:])
            if op.startswith('v_cmpx'): self.w |= {('s', 'exec')}
        elif op.startswith('ds_'):
            self.kind = 'ds'
            if op.startswith(('ds_read', 'ds_bpermute', 'ds_permute', 'ds_swizzle')) or '_rtn' in op:
                self.w = R[0]; self.r = allr(R[1:])
            else:
                self.r = allr(R)
        elif op.startswith(('buffer_', 'global_')):
            self.kind = 'vm'
            self.lds = ' lds' in (' ' + mods) or 'load_lds' in op
            if op in ('buffer_wbl2', 'buffer_inv'):
                pass
            elif 'load' in op and not self.lds:
                self.w = R[0]; self.r = allr(R[1:])
            elif 'atomic' in op and 'sc0' in mods:
                self.w = R[0]; self.r = allr(R)
            else:
                self.r = allr(R)
            if self.lds: self.r |= {('s', 'm0')}
            self.wide = set()
            if 'store' in op and ('x3' in op or 'x4' in op):
                self.wide = R[0] if op.startswith('buffer') else R[1]
        elif op.startswith(('s_load', 's_memrealtime', 's_memtime', 's_buffer_load')):
            self.kind = 'smem'; self.w = R[0]; self.r = allr(R[1:])
        elif op == 's_waitcnt':
            self.kind = 'wait'
            m = re.search(r'vmcnt\((\d+)\)', t); self.vmc = int(m.group(1)) if m else None
            m = re.search(r'lgkmcnt\((\d+)\)', t); self.lgc = int(m.group(1)) if m else None
        elif op == 's_nop':
            self.kind = 'nop'; self.n = int(ops[0], 0) + 1
        elif op.startswith(('s_branch', 's_cbranch')):
            self.kind = 'br'; self.target = ops[0]
        elif op == 's_endpgm':
            self.kind = 'end'
        elif op.startswith('s_'):
            self.kind = 'salu'
            if op.startswith(('s_cmp', 's_bitcmp', 's_barrier', 's_sleep', 's_setprio', 's_setreg')):
                self.r = allr(R)
            else:
                self.w = set(R[0]) if R else set(); self.r = allr(R[1:])
                if 'saveexec' in op: self.w |= {('s', 'exec')}
                if op.startswith(('s_addk', 's_mulk', 's_bitset')): self.r |= R[0]

def need_states(p, c):
    n = 0
    vw = {x for x in p.w if x[0] in 'va'}
    sw = {x for x in p.w if x[0] == 's'}
    if p.kind == 'valu':
        if c.kind == 'mfma' and vw & c.r: n = max(n, 2)
        if c.kind == 'valu' and c.dpp and vw & c.r: n = max(n, 2)
        if c.kind == 'valu' and 'permlane' in c.op and vw & c.r: n = max(n, 2)
        if c.kind == 'valu' and c.op.startswith(('v_readlane', 'v_readfirstlane')) and vw & c.r: n = max(n, 1)
        if p.op.startswith(TRANS) and c.kind in ('valu', 'mfma') and vw & c.r: n = max(n, 1)
        if sw:
            if c.kind == 'valu' and sw & c.r:
                n = max(n, 4 if c.op.startswith(('v_readlane', 'v_writelane')) else 2)
            if c.kind == 'vm' and sw & c.r: n = max(n, 5)
    if p.kind == 'mfma':
        k = {4: 8, 8: 12}[p.passes]
        if c.kind == 'mfma':
            if p.w & c.ab: n = max(n, k)
            if p.w & c.c and p.w != c.c: n = max(n, k - 2)
            if p.w & c.w and p.w != c.c: n = max(n, k - 2)
        elif c.kind in ('valu', 'ds', 'vm') and p.w & (c.r | c.w): n = max(n, k)
        if c.kind == 'valu' and p.c & c.w: n = max(n, {4: 3, 8: 7}[p.passes])
    if p.kind == 'vm' and getattr(p, 'wide', None):
        if c.kind in ('valu', 'mfma') and p.wide & c.w: n = max(n, 2)
        elif p.wide & c.w: n = max(n, 1)
    if p.kind == 'salu' and ('s', 'm0') in p.w and c.kind == 'vm' and c.lds: n = max(n, 1)
    return n

def check(lines, entry=0, maxstates=400000):
    prog, labels = [], {}
    for ln in lines:
        if ln.endswith(':'):
            labels[ln[:-1]] = len(prog)
        elif ln.startswith(('.', ';')):
            continue
        else:
            prog.append(Ins(ln))
    errs = set()
    seen = set()
    stack = [(entry, (), (), ())]
    nst = 0
    while stack:
        pc, vmq, lgq, win = stack.pop()
        while True:
            key = (pc, vmq, lgq, win)
            ins = prog[pc]
            if ins.kind == 'br' or pc in labels.values():
                if key in seen: break
                seen.add(key); nst += 1
                if nst > maxstates: raise RuntimeError('too many states')
            touched = ins.r | ins.w
            for q in vmq:
                if prog[q].w & touched:
                    errs.add(f'pending vm load [{prog[q].text}] touched by [{ins.text}] @{pc}')
            for q in lgq:
                if prog[q].w & touched:
                    errs.add(f'pending lgkm load [{prog[q].text}] touched by [{ins.text}] @{pc}')
            for (q, d) in win:
                k = need_states(prog[q], ins)
                if d < k:
                    errs.add(f'hazard need {k} have {d}: [{prog[q].text}] -> [{ins.text}] @{pc}')
            step = ins.n if ins.kind == 'nop' else 1
            win = tuple((q, d + step) for (q, d) in win if d + step < 12)
            if ins.kind in ('valu', 'mfma', 'vm', 'salu') and (ins.kind != 'salu' or ('s', 'm0') in ins.w):
                win = win + ((pc, 0),)
            if ins.kind == 'vm':
                vmq = (vmq + (pc,))[-64:]
            elif ins.kind in ('ds', 'smem'):
                lgq = lgq + (pc,)
            elif ins.kind == 'wait':
                if ins.vmc is not None:
                    vmq = vmq[len(vmq) - ins.vmc:] if ins.vmc and len(vmq) > ins.vmc else (vmq if ins.vmc else ())
                if ins.lgc is not None:
                    if ins.lgc == 0: lgq = ()
                    else:
                        if any(prog[q].kind == 'smem' for q in lgq):
                            errs.add(f'counted lgkmcnt with SMEM outstanding @{pc} [{ins.text}]')
                        if len(lgq) > ins.lgc: lgq = lgq[len(lgq) - ins.lgc:]
            while vmq and not prog[vmq[0]].w: vmq = vmq[1:]
            while lgq and not prog[lgq[0]].w and prog[lgq[0]].kind != 'smem': lgq = lgq[1:]
            if ins.kind == 'end': break
            if ins.kind == 'br':
                tgt = labels[ins.target]
                if ins.op == 's_branch':
                    pc = tgt; continue
                stack.append((tgt, vmq, lgq, win))
            pc += 1
    return sorted(errs)
```

```python
import sys
from asmlib import Asm, v, a_, s, check

NAME = 'adaLN_cond__ssm_conv_h3__moe_arch_mod__prompt'

W_EPOCH = 0
W_FLAG1 = 0x1000
W_FLAGC = 0x1A000
W_KEYS  = 0x20000
W_MOD   = 0x22000
W_HID   = 0x26000
W_ROWS  = 0x30000
W_BASE  = 0xD0000
W_KVT   = 0x200000
W_Y     = 0x500000
W_STAMP = 0x800000
W_SIZE  = 0x900000

L_KC, KCW, KC1 = 0, 8320, 4160
L_XB, XBW = 33280, 4608
L_YS = 51712
L_WB1 = 0
L_WB2 = 81920
L_XA, XAW = 139264, 1280
L_MOD = 144384
L_SCR = 159744
L_TOTAL = 160256

P_Q, P_K, P_V, P_SH, P_SK, P_SD, P_BX, P_WR = 4, 6, 8, 10, 12, 14, 16, 18
P_WG, P_WU, P_WD, P_C, P_WM, P_OUT, P_DBG, P_WS = 20, 22, 24, 26, 28, 30, 32, 34
R_K, R_V, R_WS, R_Q, R_OUT, R_G1, R_G2, R_SH, R_WR = 36, 40, 44, 48, 52, 56, 60, 64, 68
sX, sJ, sW, sT = 72, 73, 74, 75
sC4, sC8, sC12, sC16, sC5120 = 76, 77, 78, 79, 80
sA, sB, sC, sD_, sE = 81, 82, 83, 84, 85
sSD, sKEY, sSLOT = 86, 87, 88
sSPIN, sHI, sPLO, sPHI, sTAG, sF, sROLE, sMI = 90, 91, 92, 93, 94, 95, 96, 97
sST = 98
SOFF = ['0', s(sC4), s(sC8), s(sC12), s(sC16)]
vL = 1
vSTAMP = 255
SPIN = 0x20000


def gen(opt):
    FS1 = opt.get('fs1', 16)
    FSC = opt.get('fsc', 16)
    PD = opt.get('pd', 8)
    NB = PD + 2
    stamps = opt.get('stamps', False)
    A = Asm()

    def stamp(k):
        if not stamps:
            return
        A(f's_memrealtime {s(sST,2)}')
        A.wait0(lg=True)
        A(f'v_writelane_b32 v{vSTAMP}, s{sST}, {k}')

    def srd(r, p, size):
        A(f's_mov_b64 {s(r,2)}, {s(p,2)}')
        A(f's_mov_b32 s{r+2}, {size}')
        A(f's_mov_b32 s{r+3}, 0x20000')

    def spin_begin(name):
        lab = A.newlabel(name)
        A(f's_mov_b32 s{sSPIN}, {SPIN}')
        A.label(lab)
        return lab

    def spin_end(lab):
        ok = lab + '_ok'
        A(f's_cbranch_vccz {ok}')
        A(f's_sub_u32 s{sSPIN}, s{sSPIN}, 1')
        A(f's_cbranch_scc0 {lab}')
        A.label(ok)

    def unpack(dst, src):
        A(f'v_lshlrev_b32 v{dst}, 16, v{src}')
        A(f'v_and_b32 v{dst+1}, s{sHI}, v{src}')

    def red32(rs, tmp, op='add_f32'):
        pad = max(0, 2 - (len(rs) - 1))
        for sh in (8, 4, 2, 1):
            A.nop(pad if sh != 8 else 2)
            for r in rs:
                A(f'v_{op}_dpp v{r}, v{r}, v{r} row_ror:{sh} row_mask:0xf bank_mask:0xf')
        for i, r in enumerate(rs):
            A(f'v_mov_b32 v{tmp+i}, v{r}')
        A.nop(2)
        for i, r in enumerate(rs):
            A(f'v_permlane16_swap_b32 v{tmp+i}, v{r}')
        for i, r in enumerate(rs):
            A(f'v_{op} v{r}, v{tmp+i}, v{r}')

    def sum20(dst, src, tmp):
        for i in range(5):
            A(f'v_pk_add_f32 {v(tmp+2*i,2)}, {v(src+4*i,2)}, {v(src+4*i+2,2)}')
        A(f'v_pk_add_f32 {v(tmp,2)}, {v(tmp,2)}, {v(tmp+2,2)}')
        A(f'v_pk_add_f32 {v(tmp+4,2)}, {v(tmp+4,2)}, {v(tmp+6,2)}')
        A(f'v_pk_add_f32 {v(tmp,2)}, {v(tmp,2)}, {v(tmp+8,2)}')
        A(f'v_pk_add_f32 {v(tmp,2)}, {v(tmp,2)}, {v(tmp+4,2)}')
        A(f'v_add_f32 v{dst}, v{tmp}, v{tmp+1}')

    def dots20(items):
        for i in range(10):
            for (d, x, y, t) in items:
                if i == 0:
                    A(f'v_pk_mul_f32 {v(t,2)}, {v(x,2)}, {v(y,2)}')
                else:
                    A(f'v_pk_fma_f32 {v(t,2)}, {v(x+2*i,2)}, {v(y+2*i,2)}, {v(t,2)}')
        for (d, x, y, t) in items:
            A(f'v_add_f32 v{d}, v{t}, v{t+1}')

    def quadpos(dst, src, tmp):
        A(f'v_and_b32 v{tmp}, 1, v{src}')
        A(f'v_bfe_u32 v{dst}, v{src}, 1, 1')
        A(f'v_lshl_or_b32 v{dst}, v{tmp}, 1, v{dst}')
        A(f'v_and_b32 v{tmp}, -4, v{src}')
        A(f'v_or_b32 v{dst}, v{tmp}, v{dst}')
        A(f'v_lshlrev_b32 v{dst}, 3, v{dst}')

    def dma_loop(voff, r, n, gstep, lds0, g0=None):
        lab = A.newlabel('dma')
        A(f's_mov_b32 m0, {lds0}')
        A(f's_mov_b32 s{sA}, {g0 if g0 is not None else 0}')
        A(f's_mov_b32 s{sB}, {n}')
        A.label(lab)
        A(f'buffer_load_dwordx4 v{voff}, {s(r,4)}, s{sA} offen lds')
        A(f's_add_u32 s{sA}, s{sA}, {gstep}')
        A(f's_add_u32 m0, m0, 1024')
        A(f's_sub_u32 s{sB}, s{sB}, 1')
        A(f's_cmp_lg_u32 s{sB}, 0')
        A(f's_cbranch_scc1 {lab}')

    A('s_cmp_ge_u32 s2, 256')
    A('s_cbranch_scc1 L_end')
    A('s_load_dwordx16 s[4:19], s[0:1], 0')
    A('s_load_dwordx16 s[20:35], s[0:1], 64')
    if stamps:
        A(f's_memrealtime {s(sST,2)}')
        A(f'v_mov_b32 v{vSTAMP}, 0')
    A(f'v_lshrrev_b32 v2, 6, v0')
    A(f'v_and_b32 v{vL}, 63, v0')
    A(f's_and_b32 s{sX}, s2, 7')
    A(f'v_readfirstlane_b32 s{sW}, v2')
    A(f's_lshr_b32 s{sJ}, s2, 3')
    for r, c in ((sC4, 4096), (sC8, 8192), (sC12, 12288), (sC16, 16384), (sC5120, 5120),
                 (sHI, 0xffff0000), (sPLO, 0x05040100), (sPHI, 0x07060302)):
        A(f's_mov_b32 s{r}, {hex(c)}')
    A(f'''
    s_mul_i32 s{sA}, s{sX}, 7
    s_add_u32 s{sA}, s{sA}, s{sJ}
    s_cmp_lt_u32 s{sJ}, 23
    s_cselect_b32 s{sB}, 20, 25
    s_sub_u32 s{sF}, s{sA}, s{sB}
    s_cmp_lt_u32 s{sF}, 54
    s_cselect_b32 s{sROLE}, 1, 3
    s_sub_u32 s{sA}, s2, 120
    s_cmp_lt_u32 s{sJ}, 23
    s_cselect_b32 s{sMI}, s{sA}, 99
    s_mul_i32 s{sA}, s{sX}, 5
    s_add_u32 s{sA}, s{sA}, s{sJ}
    s_sub_u32 s{sA}, s{sA}, 23
    s_sub_u32 s{sB}, s2, 184
    s_cmp_lt_u32 s{sB}, 40
    s_cselect_b32 s{sF}, s{sA}, s{sF}
    s_cselect_b32 s{sMI}, s{sB}, s{sMI}
    s_cselect_b32 s{sROLE}, 2, s{sROLE}
    s_cmp_lt_u32 s{sJ}, 20
    s_cselect_b32 s{sROLE}, 0, s{sROLE}
    ''')
    vM, vH, vS, vT = 4, 5, 6, 7
    A(f'''
    v_and_b32 v2, 7, v{vL}
    v_lshrrev_b32 v3, 3, v{vL}
    s_mul_i32 s{sA}, s{sJ}, 81920
    s_mul_i32 s{sB}, s{sX}, 160
    s_lshl_b32 s{sC}, s{sW}, 6
    s_add_u32 s{sA}, s{sA}, s{sB}
    s_add_u32 s{sA}, s{sA}, s{sC}
    v_mul_u32_u24 v{vM}, 10240, v2
    v_lshl_add_u32 v{vM}, v3, 3, v{vM}
    v_add_u32 v{vM}, s{sA}, v{vM}
    v_subrev_u32 v{vH}, 3840, v{vM}
    s_add_u32 s{sB}, s{sB}, s{sC}
    s_lshl_b32 s{sB}, s{sB}, 2
    v_lshlrev_b32 v{vS}, 5, v3
    v_add_u32 v{vS}, s{sB}, v{vS}
    s_lshl_b32 s{sB}, s{sB}, 9
    s_lshl_b32 s{sC}, s{sJ}, 7
    s_add_u32 s{sB}, s{sB}, s{sC}
    s_add_u32 s{sB}, s{sB}, {W_KVT}
    v_lshlrev_b32 v{vT}, 14, v3
    v_lshl_add_u32 v{vT}, v2, 4, v{vT}
    v_add_u32 v{vT}, s{sB}, v{vT}
    ''')
    A.wait0(lg=True)
    if stamps:
        A(f'v_writelane_b32 v{vSTAMP}, s{sST}, 0')
    srd(R_K, P_K, 2621440)
    srd(R_V, P_V, 2621440)
    srd(R_SH, P_SH, 5120)
    srd(R_WS, P_WS, W_SIZE)
    srd(R_Q, P_Q, 2621440)
    srd(R_OUT, P_OUT, 2621440)
    srd(R_WR, P_WR, 1280)
    A(f's_load_dword s{sT}, {s(P_WS,2)}, {W_EPOCH}')
    A(f'''
    s_mul_i32 s{sA}, s{sX}, 80
    s_lshl_b32 s{sB}, s{sJ}, 2
    s_add_u32 s{sA}, s{sA}, s{sB}
    s_add_u32 s{sA}, s{sA}, s{sW}
    s_min_u32 s{sA}, s{sA}, 639
    s_lshr_b32 s{sA}, s{sA}, 1
    s_lshl_b32 s{sA}, s{sA}, 2
    s_load_dword s{sSD}, {s(P_SD,2)}, s{sA}
    s_cmp_eq_u32 s{sW}, 3
    s_cbranch_scc1 L_loader
    ''')

    KR, VR, SR, WF, KF, VF, KS, KO = 16, 38, 54, 64, 80, 124, 156, 188
    A(f's_cmp_eq_u32 s{sW}, 2')
    A(f's_cselect_b32 exec_hi, 0, -1')
    A.vm_n = 0
    A.vm(f'buffer_load_dwordx4 {v(SR,4)}, v{vS}, {s(R_SH,4)}, 0 offen')
    hS = A.vm(f'buffer_load_dwordx4 {v(SR+4,4)}, v{vS}, {s(R_SH,4)}, 0 offen offset:16')
    hK = []
    for i in range(3):
        hK.append(A.vm(f'buffer_load_dwordx2 {v(KR+2*i,2)}, v{vH}, {s(R_K,4)}, 0 offen offset:{1280*i}'))
    for i in range(8):
        so = '0' if i < 4 else s(sC5120)
        hK.append(A.vm(f'buffer_load_dwordx2 {v(KR+6+2*i,2)}, v{vM}, {s(R_K,4)}, {so} offen offset:{1280*(i&3)}'))
    hV = []
    for i in range(8):
        so = '0' if i < 4 else s(sC5120)
        hV.append(A.vm(f'buffer_load_dwordx2 {v(VR+2*i,2)}, v{vM}, {s(R_V,4)}, {so} offen offset:{1280*(i&3)}'))
    A.wait(vm=hS)
    for c in range(4):
        A(f'v_lshlrev_b32 v{WF+c}, 16, v{SR+2*c}')
        A(f'v_and_b32 v{WF+4+c}, s{sHI}, v{SR+2*c}')
        A(f'v_lshlrev_b32 v{WF+8+c}, 16, v{SR+2*c+1}')
        A(f'v_and_b32 v{WF+12+c}, s{sHI}, v{SR+2*c+1}')
    for i in range(11):
        if i in (0, 4, 8):
            A.wait(vm=hK[min(i + 3, 10)])
        unpack(KF + 4 * i, KR + 2 * i)
        unpack(KF + 4 * i + 2, KR + 2 * i + 1)
        t = i - 3
        if t >= 0:
            for jt in (3, 2, 1, 0):
                for p in range(2):
                    d = v(KS + 4 * t + 2 * p, 2)
                    x = v(KF + 4 * (t + 3 - jt) + 2 * p, 2)
                    w = v(WF + 4 * jt + 2 * p, 2)
                    if jt == 3:
                        A(f'v_pk_mul_f32 {d}, {x}, {w}')
                    else:
                        A(f'v_pk_fma_f32 {d}, {x}, {w}, {d}')
    stamp(1)
    for t in range(8):
        if t in (0, 4):
            A.wait(vm=hV[t + 3])
        unpack(VF + 4 * t, VR + 2 * t)
        unpack(VF + 4 * t + 2, VR + 2 * t + 1)
        for p in range(2):
            A(f'v_pk_mul_f32 {v(KS+4*t+2*p,2)}, {v(KS+4*t+2*p,2)}, {v(VF+4*t+2*p,2)}')
    for c in range(4):
        for m in range(4):
            A(f'v_cvt_pk_bf16_f32 v{KO+4*c+m}, v{KS+4*(7-2*m)+c}, v{KS+4*(6-2*m)+c}')
        A.vm(f'buffer_store_dwordx4 {v(KO+4*c,4)}, v{vT}, {s(R_WS,4)}, {SOFF[c]} offen sc1')
    A('s_mov_b64 exec, -1')
    A.wait0(lg=True)
    A(f's_add_u32 s{sT}, s{sT}, 1')
    A(f's_and_b32 s{sTAG}, s{sT}, 0xffff')
    stamp(2)
    vFA, vFV = 8, 9
    A(f'''
    s_mul_i32 s{sA}, s{sX}, 3
    s_add_u32 s{sA}, s{sA}, s{sW}
    s_lshl_b32 s{sA}, s{sA}, 5
    s_add_u32 s{sA}, s{sA}, s{sJ}
    s_mul_i32 s{sA}, s{sA}, {FS1}
    s_add_u32 s{sA}, s{sA}, {W_FLAG1}
    v_mov_b32 v{vFA}, s{sA}
    v_mov_b32 v{vFV}, s{sT}
    s_cmp_eq_u32 s{sROLE}, 0
    s_cbranch_scc1 L_conv
    ''')

    def publish_flag():
        A.wait0(vm=True)
        A('s_mov_b64 exec, 1')
        A(f'buffer_store_dword v{vFV}, v{vFA}, {s(R_WS,4)}, 0 offen sc1')
        A('s_mov_b64 exec, -1')

    publish_flag()
    stamp(3)
    A('s_branch L_n1')

    A.label('L_loader')
    A(f's_cmp_lg_u32 s{sROLE}, 0')
    A('s_cbranch_scc1 L_loader_n')
    srd(R_G1, P_SK, 2621440)
    vK, vP0, vZ, vY, vD = 4, 5, 8, 6, 7
    A(f'''
    s_mul_i32 s{sA}, s{sX}, 20
    s_add_u32 s{sA}, s{sA}, s{sJ}
    s_lshl_b32 s{sB}, s{sA}, 14
    v_lshlrev_b32 v{vD}, 4, v{vL}
    v_add_u32 v{vK}, s{sB}, v{vD}
    v_add_u32 v{vP0}, -4, v{vK}
    v_bfrev_b32 v2, 1
    v_cmp_eq_u32 vcc, 0, v{vL}
    s_nop 1
    v_cndmask_b32 v{vP0}, v{vP0}, v2, vcc
    ''')
    A.vm_n = 0
    hk = []
    for cw in range(4):
        for i in range(4):
            idx = cw * 4 + i
            A.vm(f'buffer_load_dwordx4 {v(16+4*idx,4)}, v{vK}, {s(R_G1,4)}, {SOFF[cw]} offen offset:{1024*i}')
            if i == 0:
                hk.append(A.vm(f'buffer_load_dword v{80+idx}, v{vP0}, {s(R_G1,4)}, {SOFF[cw]} offen'))
            else:
                hk.append(A.vm(f'buffer_load_dword v{80+idx}, v{vK}, {s(R_G1,4)}, {SOFF[cw]} offen offset:{1024*i-4}'))
    A(f'''
    s_lshl_b32 s{sB}, s{sA}, 7
    s_add_u32 s{sB}, s{sB}, {W_Y}
    v_lshrrev_b32 v2, 3, v{vL}
    v_and_b32 v3, 7, v{vL}
    v_mul_u32_u24 v{vY}, 20480, v2
    v_lshl_add_u32 v{vY}, v3, 4, v{vY}
    v_add_u32 v{vY}, s{sB}, v{vY}
    v_mov_b32 v12, -1
    v_mov_b32 v13, -1
    v_mov_b32 v14, -1
    v_mov_b32 v15, -1
    s_mov_b32 s{sC}, 0
    ''')
    for i in range(16):
        A.vm(f'buffer_store_dwordx4 v[12:15], v{vY}, {s(R_WS,4)}, s{sC} offen sc1')
        A(f's_add_u32 s{sC}, s{sC}, 163840')
    A.wait0(lg=True)
    A(f's_add_u32 s{sT}, s{sT}, 1')
    A(f's_and_b32 s{sTAG}, s{sT}, 0xffff')
    for i in range(4):
        A(f'v_mov_b32 v{vZ+i}, 0')
    A(f'''
    v_lshrrev_b32 v2, 5, v{vL}
    v_and_b32 v3, 31, v{vL}
    v_mul_u32_u24 v2, {XBW}, v2
    v_lshl_add_u32 v2, v3, 4, v2
    ds_write_b128 v2, {v(vZ,4)} offset:{L_XB}
    ds_write_b128 v2, {v(vZ,4)} offset:{L_XB+2*XBW}
    v_bfe_u32 v2, v{vL}, 1, 3
    v_and_b32 v3, 1, v{vL}
    v_mul_u32_u24 v2, {KC1}, v2
    v_lshl_add_u32 v2, v3, 4, v2
    ds_write_b128 v2, {v(vZ,4)} offset:{L_KC}
    ''')
    for cw in range(4):
        for i in range(4):
            idx = cw * 4 + i
            d, t = 16 + 4 * idx, 96 + 4 * (idx & 3)
            A.wait(vm=hk[idx])
            A(f'ds_write_b128 v{vD}, {v(d,4)} offset:{L_KC+cw*KCW+32+1024*i}')
            A(f'v_alignbyte_b32 v{t}, v{d}, v{80+idx}, 2')
            for m in range(1, 4):
                A(f'v_alignbyte_b32 v{t+m}, v{d+m}, v{d+m-1}, 2')
            A(f'ds_write_b128 v{vD}, {v(t,4)} offset:{L_KC+cw*KCW+KC1+32+1024*i}')
    stamp(2)
    A(f'''
    s_mul_i32 s{sA}, s{sA}, {FSC}
    s_add_u32 s{sA}, s{sA}, {W_FLAGC}
    v_mov_b32 v{vFA}, s{sA}
    v_mov_b32 v{vFV}, s{sT}
    ''')
    A.wait0(lg=True)

    A.label('L_conv')
    vA0, vB, vAD, vYW, vYR, vYG = 10, 14, 16, 20, 21, 22
    A(f'''
    v_and_b32 v2, 15, v{vL}
    v_lshrrev_b32 v3, 4, v{vL}
    v_lshlrev_b32 v4, 3, v3
    v_sub_u32 v4, v2, v4
    v_add_u32 v4, 25, v4
    v_and_b32 v5, 1, v4
    v_mul_u32_u24 v5, {KC1+2}, v5
    v_lshl_add_u32 v5, v4, 1, v5
    s_mul_i32 s{sA}, s{sW}, {KCW}
    v_add_u32 v{vA0}, s{sA}, v5
    v_add_u32 v{vA0+1}, 1024, v{vA0}
    v_add_u32 v{vA0+2}, 2048, v{vA0}
    v_add_u32 v{vA0+3}, 3072, v{vA0}
    s_barrier
    ''')
    NPRE = opt.get('npre', 40)

    def afrag(q):
        o = 16 * (q & 15)
        A(f'ds_read2_b32 {a_(4*q,2)}, v{vA0+(q>>4)} offset0:{o} offset1:{o+1}')
        A(f'ds_read2_b32 {a_(4*q+2,2)}, v{vA0+(q>>4)} offset0:{o+2} offset1:{o+3}')
    for q in range(NPRE):
        afrag(q)
    publish_flag()
    stamp(3)
    for q in range(NPRE, 64):
        afrag(q)
    A(f'''
    v_sub_u32 v4, 16, v4
    s_bitcmp1_b32 s{sW}, 0
    s_cselect_b32 s{sA}, 16, 0
    s_lshr_b32 s{sSD}, s{sSD}, s{sA}
    s_and_b32 s{sSD}, s{sSD}, 0xffff
    v_and_b32 v5, 1, v4
    v_lshlrev_b32 v5, 4, v5
    v_lshlrev_b32 v5, v5, s{sSD}
    v_ashrrev_i32 v4, 1, v4
    ''')
    for m in range(4):
        A(f'v_cmp_eq_u32 vcc, {m}, v4')
        A.nop(2)
        A(f'v_cndmask_b32 v{vAD+m}, 0, v5, vcc')
    A(f'''
    s_mul_i32 s{sA}, s{sW}, {XBW}
    s_add_u32 s{sA}, s{sA}, {L_XB+32}
    v_lshlrev_b32 v{vB}, 5, v2
    v_lshl_add_u32 v{vB}, v3, 4, v{vB}
    v_add_u32 v{vB}, s{sA}, v{vB}
    s_add_u32 m0, s{sA}, 480
    s_lshl_b32 s{sA}, s{sW}, 10
    v_lshlrev_b32 v{vYW}, 5, v2
    v_lshl_add_u32 v{vYW}, v3, 3, v{vYW}
    v_add_u32 v{vYW}, s{sA}, v{vYW}
    v_lshlrev_b32 v{vYR}, 2, v0
    v_add_u32 v{vYR}, {L_YS}, v{vYR}
    s_mul_i32 s{sA}, s{sX}, 20
    s_add_u32 s{sA}, s{sA}, s{sJ}
    s_lshl_b32 s{sB}, s{sA}, 7
    s_add_u32 s{sB}, s{sB}, {W_Y}
    v_lshrrev_b32 v4, 3, v0
    v_and_b32 v5, 7, v0
    v_mul_u32_u24 v{vYG}, 20480, v4
    v_lshl_add_u32 v{vYG}, v5, 4, v{vYG}
    v_add_u32 v{vYG}, s{sB}, v{vYG}
    s_lshl_b32 s{sA}, s{sA}, 14
    s_lshl_b32 s{sB}, s{sW}, 12
    s_add_u32 s{sA}, s{sA}, s{sB}
    s_add_u32 s{sA}, s{sA}, {W_KVT}
    v_lshlrev_b32 v6, 4, v{vL}
    v_add_u32 v6, s{sA}, v6
    s_mul_i32 s{sA}, s{sX}, 3
    s_lshr_b32 s{sB}, s{sJ}, 3
    s_add_u32 s{sA}, s{sA}, s{sB}
    s_mul_i32 s{sA}, s{sA}, {32*FS1}
    s_add_u32 s{sA}, s{sA}, {W_FLAG1}
    v_and_b32 v7, 31, v{vL}
    v_mul_u32_u24 v7, {FS1}, v7
    v_add_u32 v7, s{sA}, v7
    ''')
    stamp(4)
    lab = spin_begin('kv')
    A(f'buffer_load_dword v4, v7, {s(R_WS,4)}, 0 offen sc1')
    A.wait0(vm=True)
    A(f'v_cmp_ne_u32 vcc, s{sT}, v4')
    spin_end(lab)
    stamp(5)
    A.vm_n = 0
    hx = [A.vm(f'buffer_load_dwordx4 v6, {s(R_WS,4)}, 0 offen offset:{1024*i} sc1 lds') for i in range(4)]
    A.wait0(lg=True)
    A.lg_n = 0

    BR, ACC, YP, YQ, YO = 32, 96, 112, 120, 124
    steps = []
    for p in range(4):
        t0, t1 = 2 * p, 2 * p + 1
        for b in range(t1 + 1):
            for r in range(8):
                mf = []
                if b <= t0:
                    mf.append((0, 8 * (t0 - b) + r))
                mf.append((1, 8 * (t1 - b) + r))
                if r == 0 and b == t0:
                    mf.append((0, -1))
                if r == 0 and b == t1:
                    mf.append((1, -1))
                steps.append(dict(p=p, b=b, r=r, w=8 * b - r, mf=mf))
    nst = len(steps)
    ev = {}
    pend = {}
    for p in range(4):
        last = max(i for i, st in enumerate(steps) if st['p'] == p)
        ev.setdefault(last - 8 + 6, []).append(('cvt', p, 0))
        ev.setdefault(last + 3, []).append(('cvt', p, 1))
        ev.setdefault(last + 7, []).append(('bar', p))
        ev.setdefault(last + 11, []).append(('st', p))
    hB = {}
    landed = [-1]

    def bread(i):
        st = steps[i]
        blk = st['b'] >> 1
        if blk > landed[0]:
            A.wait(vm=hx[blk])
            landed[0] = blk
        hB[i] = A.lg(f'ds_read_b128 {v(BR+4*(i%NB),4)}, v{vB} offset:{64*(st["w"]+7)}')

    def event(e):
        p = e[1]
        if e[0] == 'cvt':
            acc = ACC + 8 * (p & 1) + 4 * e[2]
            d = YP + 2 * e[2]
            A(f'v_cvt_pk_bf16_f32 v{d}, v{acc}, v{acc+1}')
            A(f'v_cvt_pk_bf16_f32 v{d+1}, v{acc+2}, v{acc+3}')
            pend[p] = A.lg(f'ds_write_b64 v{vYW}, {v(d,2)} offset:{L_YS+4096*p+512*e[2]}')
        elif e[0] == 'bar':
            A.wait(lg=pend[p])
            A('s_barrier')
            A.lg(f'ds_read2st64_b32 {v(YQ,2)}, v{vYR} offset0:{16*p} offset1:{16*p+4}')
            pend[p] = A.lg(f'ds_read2st64_b32 {v(YQ+2,2)}, v{vYR} offset0:{16*p+8} offset1:{16*p+12}')
        else:
            A.wait(lg=pend[p])
            A(f'v_perm_b32 v{YO}, v{YQ+1}, v{YQ}, s{sPLO}')
            A(f'v_perm_b32 v{YO+1}, v{YQ+3}, v{YQ+2}, s{sPLO}')
            A(f'v_perm_b32 v{YO+2}, v{YQ+1}, v{YQ}, s{sPHI}')
            A(f'v_perm_b32 v{YO+3}, v{YQ+3}, v{YQ+2}, s{sPHI}')
            A(f's_mov_b32 s{sA}, {655360*p}')
            A.vm(f'buffer_store_dwordx4 {v(YO,4)}, v{vYG}, {s(R_WS,4)}, s{sA} offen sc1')

    for i in range(PD):
        bread(i)
    started = set()
    for i, st in enumerate(steps):
        if i + PD < nst:
            bread(i + PD)
        A.wait(lg=hB[i])
        for (k, q) in st['mf']:
            acc = v(ACC + 8 * (st['p'] & 1) + 4 * k, 4)
            src = v(vAD, 4) if q < 0 else a_(4 * q, 4)
            c = acc if (st['p'], k) in started else '0'
            started.add((st['p'], k))
            A(f'v_mfma_f32_16x16x32_bf16 {acc}, {src}, {v(BR+4*(i%NB),4)}, {c}')
        for e in ev.pop(i, []):
            event(e)
    A.nop(8)
    for i in sorted(ev):
        for e in ev[i]:
            event(e)
    stamp(6)
    A('s_branch L_ln')

    A.label('L_loader_n')
    A.wait0(lg=True)
    A(f's_add_u32 s{sT}, s{sT}, 1')
    A(f's_and_b32 s{sTAG}, s{sT}, 0xffff')
    A(f's_cmp_ge_u32 s{sMI}, 60')
    A('s_cbranch_scc1 L_loader_nomod')
    srd(R_G1, P_C, 1280)
    srd(R_G2, P_WM, 4915200)
    A(f'''
    v_lshlrev_b32 v4, 3, v{vL}
    v_and_b32 v5, 31, v{vL}
    v_lshlrev_b32 v6, 3, v5
    buffer_load_dwordx2 v[16:17], v4, {s(R_G1,4)}, 0 offen
    buffer_load_dwordx2 v[18:19], v4, {s(R_G1,4)}, 0 offen offset:512
    buffer_load_dwordx2 v[20:21], v6, {s(R_G1,4)}, 0 offen offset:1024
    v_lshrrev_b32 v2, 3, v{vL}
    v_and_b32 v3, 6, v2
    v_xor_b32 v3, v3, v{vL}
    v_and_b32 v3, 7, v3
    v_mul_u32_u24 v7, 7680, v2
    v_lshl_add_u32 v7, v3, 4, v7
    s_lshl_b32 s{sA}, s{sMI}, 7
    v_add_u32 v7, s{sA}, v7
    ''')
    A.wait0(vm=True)
    dma_loop(7, R_G2, 80, 61440, L_WB1)
    for i in range(6):
        unpack(24 + 2 * i, 16 + i)
    for i in range(12):
        A(f'v_mul_f32 v{40+i}, 0xbfb8aa3b, v{24+i}')
    for i in range(12):
        A(f'v_exp_f32 v{40+i}, v{40+i}')
    for i in range(12):
        A(f'v_add_f32 v{40+i}, 1.0, v{40+i}')
    for i in range(12):
        A(f'v_rcp_f32 v{40+i}, v{40+i}')
    for i in range(12):
        A(f'v_mul_f32 v{24+i}, v{24+i}, v{40+i}')
    for i in range(6):
        A(f'v_cvt_pk_bf16_f32 v{16+i}, v{24+2*i}, v{25+2*i}')
    quadpos(4, vL, 2)
    A(f'v_add_u32 v4, {L_XA}, v4')
    quadpos(6, 5, 2)
    A(f'v_add_u32 v6, {L_XA}, v6')
    A(f'''
    ds_write_b64 v4, v[16:17]
    ds_write_b64 v4, v[18:19] offset:512
    ds_write_b64 v6, v[20:21] offset:1024
    s_cmp_eq_u32 s{sROLE}, 2
    s_cbranch_scc1 L_loader_f2
    ''')
    A.wait0(vm=True, lg=True)
    A('s_branch L_n1')
    A.label('L_loader_f2')
    srd(R_G1, P_WD, 2211840)
    A(f'''
    v_lshrrev_b32 v2, 1, v{vL}
    v_and_b32 v3, 1, v{vL}
    v_mul_u32_u24 v7, 1280, v2
    v_lshl_add_u32 v7, v3, 4, v7
    s_lshl_b32 s{sA}, s{sF}, 5
    v_add_u32 v7, s{sA}, v7
    v_mov_b32 v12, 0
    v_mov_b32 v13, 0
    v_mov_b32 v14, 0
    v_mov_b32 v15, 0
    v_lshlrev_b32 v2, 4, v{vL}
    v_add_u32 v2, {L_WB2+54*1024}, v2
    ds_write_b128 v2, v[12:15]
    ds_write_b128 v2, v[12:15] offset:1024
    ''')
    dma_loop(7, R_G1, 54, 40960, L_WB2)
    A('s_waitcnt vmcnt(54) lgkmcnt(0)')
    A('s_branch L_n1')

    def f1_addr():
        srd(R_G1, P_WG, 2211840)
        srd(R_G2, P_WU, 2211840)
        A(f'''
        v_lshrrev_b32 v2, 2, v{vL}
        v_bfe_u32 v3, v{vL}, 4, 1
        v_xor_b32 v3, v3, v{vL}
        v_and_b32 v3, 3, v3
        v_mul_u32_u24 v6, 3456, v2
        s_lshl_b32 s{sA}, s{sF}, 6
        v_add_u32 v6, s{sA}, v6
        v_xor_b32 v2, 2, v3
        v_lshl_add_u32 v7, v2, 4, v6
        v_lshl_add_u32 v6, v3, 4, v6
        ''')

    A.label('L_loader_nomod')
    A(f's_cmp_lg_u32 s{sROLE}, 1')
    A('s_cbranch_scc1 L_n1')
    f1_addr()
    dma_loop(6, R_G1, 40, 55296, L_WB1)
    dma_loop(7, R_G2, 40, 55296, L_WB1 + 40960)

    A.label('L_n1')
    vKH, vRS, vCC, vAV = 10, 11, 12, 13
    A(f'''
    v_lshrrev_b32 v{vKH}, 4, v{vL}
    v_bfe_u32 v{vRS}, v{vL}, 2, 3
    v_and_b32 v{vCC}, 3, v{vL}
    v_lshrrev_b32 v2, 5, v{vL}
    v_lshl_add_u32 v14, v2, 4, v{vRS}
    s_barrier
    s_cmp_ge_u32 s{sMI}, 60
    s_cbranch_scc1 L_n3
    ''')
    stamp(4)
    A(f'''
    v_lshrrev_b32 v2, 1, v{vRS}
    v_xor_b32 v2, s{sW}, v2
    v_lshlrev_b32 v4, 7, v14
    v_lshl_add_u32 v4, v2, 5, v4
    v_lshl_add_u32 v4, v{vCC}, 3, v4
    v_add_u32 v5, 40960, v4
    v_lshlrev_b32 v{vAV}, 4, v{vKH}
    v_add_u32 v{vAV}, {L_XA}, v{vAV}
    ''')
    A.lg_n = 0
    hq = []
    for q in range(20):
        base, o = (4, q * 4096) if q < 10 else (5, (q - 10) * 4096)
        A.lg(f'ds_read_b128 {v(16+4*q,4)}, v{vAV} offset:{64*q}')
        A.lg(f'ds_read_b64_tr_b16 {v(96+4*q,2)}, v{base} offset:{o}')
        hq.append(A.lg(f'ds_read_b64_tr_b16 {v(98+4*q,2)}, v{base} offset:{o+1024}'))
        if q >= 4:
            A.wait(lg=hq[q - 4])
            A(f'v_mfma_f32_16x16x32_bf16 v[180:183], {v(16+4*(q-4),4)}, {v(96+4*(q-4),4)}, {"0" if q == 4 else "v[180:183]"}')
    for q in range(16, 20):
        A.wait(lg=hq[q])
        A(f'v_mfma_f32_16x16x32_bf16 v[180:183], {v(16+4*q,4)}, {v(96+4*q,4)}, v[180:183]')
    A(f'''
    s_barrier
    s_lshl_b32 s{sA}, s{sMI}, 8
    s_lshl_b32 s{sB}, s{sW}, 6
    s_add_u32 s{sA}, s{sA}, s{sB}
    s_add_u32 s{sA}, s{sA}, {W_MOD}
    v_lshlrev_b32 v2, 2, v{vL}
    v_add_u32 v2, s{sA}, v2
    v_mov_b32 v3, s{sTAG}
    s_nop 0
    v_cvt_pk_bf16_f32 v4, v180, v180
    v_and_or_b32 v4, v4, s{sHI}, v3
    s_mov_b64 exec, 0xffff
    buffer_store_dword v4, v2, {s(R_WS,4)}, 0 offen sc1
    s_mov_b64 exec, -1
    ''')
    stamp(5)
    A(f's_cmp_lg_u32 s{sROLE}, 1')
    A('s_cbranch_scc1 L_n3')
    f1_addr()
    A(f's_mul_i32 s{sC}, s{sW}, 10240')
    A(f's_mul_i32 s{sD_}, s{sW}, 552960')
    dma_loop(6, R_G1, 10, 55296, s(sC), s(sD_))
    A(f's_add_u32 s{sC}, s{sC}, 40960')
    dma_loop(7, R_G2, 10, 55296, s(sC), s(sD_))
    A.label('L_n3')
    A.wait0(vm=True)
    A('s_barrier')
    A(f's_cmp_eq_u32 s{sROLE}, 2')
    A('s_cbranch_scc1 L_n3_f2')
    A(f'''
    v_lshrrev_b32 v2, 1, v{vCC}
    v_and_b32 v3, 2, v{vCC}
    v_and_b32 v4, 1, v{vKH}
    v_xor_b32 v3, v3, v4
    v_xor_b32 v3, s{sW}, v3
    v_mul_u32_u24 v4, 40960, v2
    v_lshl_add_u32 v4, v14, 6, v4
    v_lshl_add_u32 v4, v3, 4, v4
    v_and_b32 v2, 1, v{vCC}
    v_lshl_add_u32 v4, v2, 3, v4
    ''')
    for q in range(20):
        A(f'ds_read_b64_tr_b16 {a_(4*q,2)}, v4 offset:{2048*q}')
        A(f'ds_read_b64_tr_b16 {a_(4*q+2,2)}, v4 offset:{2048*q+512}')
    A('s_branch L_n4')
    A.label('L_n3_f2')
    A(f'''
    s_mul_i32 s{sA}, s{sW}, {448*32}
    s_add_u32 s{sA}, s{sA}, {L_WB2}
    v_lshlrev_b32 v4, 5, v14
    v_lshl_add_u32 v4, v{vCC}, 3, v4
    v_add_u32 v4, s{sA}, v4
    ''')
    for q in range(14):
        A(f'ds_read_b64_tr_b16 {a_(4*q,2)}, v4 offset:{1024*q}')
        A(f'ds_read_b64_tr_b16 {a_(4*q+2,2)}, v4 offset:{1024*q+256}')
    A.label('L_n4')
    A.wait0(lg=True)
    stamp(6)

    A.label('L_ln')
    QR, WRR, YR, MR, FC = 16, 26, 36, 46, 62
    QF, GH, CW, C1, SB, GB, T0, T1, T2 = 64, 84, 104, 124, 144, 164, 184, 204, 224
    vQ, vYA, vMG, vML, vMR, vFC, vTAU, vHL = 4, 5, 6, 7, 8, 9, 10, 11
    X0 = 244
    A(f'''
    v_and_b32 v{vHL}, 31, v{vL}
    v_lshrrev_b32 v{vTAU}, 5, v0
    s_lshr_b32 s{sA}, s{sJ}, 1
    s_lshl_b32 s{sA}, s{sA}, 3
    s_add_u32 s{sA}, s{sA}, s{sX}
    s_and_b32 s{sB}, s{sJ}, 1
    s_lshl_b32 s{sB}, s{sB}, 3
    s_mul_i32 s{sA}, s{sA}, 20480
    v_add_u32 v2, s{sB}, v{vTAU}
    v_mul_u32_u24 v{vQ}, 1280, v2
    v_lshlrev_b32 v3, 3, v{vHL}
    v_add3_u32 v{vQ}, v{vQ}, v3, s{sA}
    s_add_u32 s{sA}, s{sA}, {W_Y}
    v_lshlrev_b32 v{vYA}, 7, v{vHL}
    v_lshl_add_u32 v{vYA}, v2, 3, v{vYA}
    v_add_u32 v{vYA}, s{sA}, v{vYA}
    ''')
    A.vm_n = 0
    for i in range(5):
        hQ = A.vm(f'buffer_load_dwordx2 {v(QR+2*i,2)}, v{vQ}, {s(R_Q,4)}, 0 offen offset:{256*i}')
    for i in range(5):
        hW = A.vm(f'buffer_load_dwordx2 {v(WRR+2*i,2)}, v3, {s(R_WR,4)}, 0 offen offset:{256*i}')
    A(f'''
    v_min_u32 v2, 59, v{vL}
    s_mul_i32 s{sA}, s{sW}, 3840
    v_lshlrev_b32 v2, 4, v2
    v_add_u32 v2, s{sA}, v2
    v_add_u32 v{vMG}, {W_MOD}, v2
    v_add_u32 v{vML}, {L_MOD}, v2
    v_lshlrev_b32 v{vMR}, 4, v{vHL}
    v_add_u32 v{vMR}, {L_MOD}, v{vMR}
    v_min_u32 v2, 159, v0
    v_mul_u32_u24 v{vFC}, {FSC}, v2
    v_add_u32 v{vFC}, {W_FLAGC}, v{vFC}
    ''')
    lab = spin_begin('mod')
    for i in range(4):
        A(f'buffer_load_dwordx4 {v(MR+4*i,4)}, v{vMG}, {s(R_WS,4)}, 0 offen offset:{960*i} sc1')
    A(f'buffer_load_dword v{FC}, v{vFC}, {s(R_WS,4)}, 0 offen sc1')
    A.wait0(vm=True)
    A(f'v_xor_b32 v2, s{sTAG}, v{MR}')
    for i in range(1, 16):
        A(f'v_bitop3_b32 v2, v2, v{MR+i}, s{sTAG} bitop3:0xf6')
    A(f'v_and_b32 v2, 0xffff, v2')
    A(f'v_bitop3_b32 v2, v2, v{FC}, s{sT} bitop3:0xf6')
    A(f'v_cmp_ne_u32 vcc, 0, v2')
    spin_end(lab)
    stamp(7)
    for i in range(16):
        A(f'v_and_b32 v{MR+i}, s{sHI}, v{MR+i}')
    for i in range(4):
        A(f'ds_write_b128 v{vML}, {v(MR+4*i,4)} offset:{960*i}')
    for i in range(10):
        unpack(QF + 2 * i, QR + i)
    sum20(X0, QF, T0)
    red32([X0], X0 + 2)
    A(f'v_mul_f32 v{X0}, {hexf(1/640)}, v{X0}')
    A.wait0(lg=True)
    A('s_barrier')
    A.lg_n = 0
    hm = {}
    for seg, dst in ((1, T1), (0, T0), (2, T2), (4, C1), (3, SB), (5, GB)):
        for i in range(5):
            hm[seg] = A.lg(f'ds_read_b128 {v(dst+4*i,4)}, v{vMR} offset:{2560*seg+512*i}')
    for i in range(10):
        A(f'v_pk_add_f32 {v(GH+2*i,2)}, {v(QF+2*i,2)}, {v(X0,2)} op_sel_hi:[1,0] neg_lo:[0,1] neg_hi:[0,1]')
    dots20([(X0 + 2, GH, GH, X0 + 4)])
    red32([X0 + 2], X0 + 4)
    A(f'v_mov_b32 v{X0+4}, {hexf(1e-5)}')
    A(f'v_fmac_f32 v{X0+4}, {hexf(1/640)}, v{X0+2}')
    A(f'v_rsq_f32 v{X0+2}, v{X0+4}')
    for i in range(10):
        unpack(CW + 2 * i, WRR + i)
    A.wait0(lg=True)
    for i in range(10):
        A(f'v_pk_fma_f32 {v(T1+2*i,2)}, {v(T1+2*i,2)}, {v(X0+2,2)}, {v(X0+2,2)} op_sel_hi:[1,0,0]')
    for i in range(10):
        A(f'v_pk_fma_f32 {v(GH+2*i,2)}, {v(GH+2*i,2)}, {v(T1+2*i,2)}, {v(T0+2*i,2)}')
    for i in range(10):
        A(f'v_pk_mul_f32 {v(GH+2*i,2)}, {v(GH+2*i,2)}, {v(T2+2*i,2)}')
    vC2 = X0 + 8
    dots20([(vC2, SB, CW, X0 + 4)])
    for i in range(10):
        A(f'v_pk_add_f32 {v(C1+2*i,2)}, {v(C1+2*i,2)}, 1.0 op_sel_hi:[1,0]')
    for i in range(10):
        A(f'v_pk_mul_f32 {v(CW+2*i,2)}, {v(CW+2*i,2)}, {v(C1+2*i,2)}')
    red32([vC2], X0 + 4)
    vSC, vID = 12, 13
    A(f'''
    v_lshlrev_b32 v{vSC}, 2, v{vTAU}
    v_add_u32 v{vSC}, {L_SCR}, v{vSC}
    s_lshl_b32 s{sA}, s2, 3
    v_add_u32 v{vID}, s{sA}, v{vTAU}
    v_mov_b32 v14, {L_SCR}
    s_add_u32 s{sA}, s{sA}, {W_KEYS}
    v_mov_b32 v15, s{sA}
    ''')
    stamp(8)
    lab = spin_begin('y')
    for i in range(5):
        A(f'buffer_load_dwordx2 {v(YR+2*i,2)}, v{vYA}, {s(R_WS,4)}, {SOFF[i]} offen sc1')
    A.wait0(vm=True)
    A(f'v_max3_u32 v2, v{YR}, v{YR+1}, v{YR+2}')
    A(f'v_max3_u32 v3, v{YR+3}, v{YR+4}, v{YR+5}')
    A(f'v_max3_u32 v2, v2, v{YR+6}, v{YR+7}')
    A(f'v_max3_u32 v3, v3, v{YR+8}, v{YR+9}')
    A(f'v_max_u32 v2, v2, v3')
    A(f'v_cmp_eq_u32 vcc, -1, v2')
    spin_end(lab)
    stamp(9)
    X1, XC, H2 = T0, T1, T2
    for i in range(10):
        unpack(X1 + 2 * i, YR + i)
    for i in range(10):
        A(f'v_pk_fma_f32 {v(X1+2*i,2)}, {v(X1+2*i,2)}, {v(GH+2*i,2)}, {v(QF+2*i,2)}')
    sum20(X0, X1, H2)
    red32([X0], X0 + 2)
    A(f'v_mul_f32 v{X0}, {hexf(1/640)}, v{X0}')
    for i in range(10):
        A(f'v_pk_add_f32 {v(XC+2*i,2)}, {v(X1+2*i,2)}, {v(X0,2)} op_sel_hi:[1,0] neg_lo:[0,1] neg_hi:[0,1]')
    dots20([(X0 + 2, XC, XC, X0 + 4), (X0 + 3, XC, CW, X0 + 6)])
    red32([X0 + 2, X0 + 3], X0 + 4)
    A(f'''
    v_mov_b32 v{X0+4}, {hexf(1e-5)}
    v_fmac_f32 v{X0+4}, {hexf(1/640)}, v{X0+2}
    v_rsq_f32 v{X0+2}, v{X0+4}
    s_movk_i32 s{sA}, 0xf800
    v_fma_f32 v{X0+3}, v{X0+3}, v{X0+2}, v{vC2}
    v_ashrrev_i32 v2, 31, v{X0+3}
    v_or_b32 v2, 0x80000000, v2
    v_xor_b32 v2, v2, v{X0+3}
    v_and_or_b32 v{vID}, v2, s{sA}, v{vID}
    ds_write_b32 v{vSC}, v{vID}
    ''')
    for i in range(10):
        A(f'v_pk_mul_f32 {v(C1+2*i,2)}, {v(C1+2*i,2)}, {v(X0+2,2)} op_sel_hi:[1,0]')
    A.wait0(lg=True)
    A('s_barrier')
    A('ds_read_b128 v[16:19], v14')
    A('ds_read_b128 v[20:23], v14 offset:16')
    for i in range(10):
        A(f'v_pk_fma_f32 {v(H2+2*i,2)}, {v(XC+2*i,2)}, {v(C1+2*i,2)}, {v(SB+2*i,2)}')
    A(f'v_mov_b32 v3, s{sT}')
    A.wait0(lg=True)
    A(f'''
    v_max3_u32 v2, v16, v17, v18
    v_max3_u32 v19, v19, v20, v21
    v_max3_u32 v2, v2, v22, v23
    v_max_u32 v2, v2, v19
    s_cmp_lg_u32 s{sW}, 0
    s_cbranch_scc1 L_nokey
    s_mov_b64 exec, 1
    buffer_store_dwordx2 v[2:3], v15, {s(R_WS,4)}, 0 offen sc1
    s_mov_b64 exec, -1
    ''')
    A.label('L_nokey')
    stamp(10)
    vRO = 12
    A(f'''
    v_cmp_eq_u32 s[{sC+1}:{sC+2}], v2, v{vID}
    s_mul_i32 s{sA}, s2, 2560
    v_lshlrev_b32 v{vRO}, 4, v{vHL}
    v_add_u32 v{vRO}, s{sA}, v{vRO}
    v_mov_b32 v3, s{sTAG}
    s_cmp_eq_u64 s[{sC+1}:{sC+2}], 0
    s_cbranch_scc1 L_norow
    s_mov_b64 exec, s[{sC+1}:{sC+2}]
    s_mov_b32 s{sA}, {W_ROWS}
    ''')
    for i in range(5):
        for k in range(2):
            A(f'v_cvt_pk_bf16_f32 v2, v{H2+4*i+2*k}, v{H2+4*i+2*k+1}')
            A(f'v_lshl_or_b32 v{16+4*i+2*k}, v2, 16, v3')
            A(f'v_and_or_b32 v{17+4*i+2*k}, v2, s{sHI}, v3')
        A(f'buffer_store_dwordx4 {v(16+4*i,4)}, v{vRO}, {s(R_WS,4)}, s{sA} offen offset:{512*i} sc1')
    A('s_mov_b64 exec, -1')
    A.label('L_norow')
    for i in range(10):
        A(f'v_pk_fma_f32 {v(X1+2*i,2)}, {v(GB+2*i,2)}, {v(H2+2*i,2)}, {v(X1+2*i,2)}')
    for i in range(5):
        A(f'v_cvt_pk_bf16_f32 v{40+2*i}, v{X1+4*i}, v{X1+4*i+1}')
        A(f'v_cvt_pk_bf16_f32 v{41+2*i}, v{X1+4*i+2}, v{X1+4*i+3}')
        A(f'buffer_store_dwordx2 {v(40+2*i,2)}, v{vQ}, {s(R_OUT,4)}, 0 offen offset:{256*i} sc1')
    A(f'''
    s_cmp_eq_u64 s[{sC+1}:{sC+2}], 0
    s_cbranch_scc1 L_nobase
    s_mov_b64 exec, s[{sC+1}:{sC+2}]
    s_movk_i32 s{sB}, 0xff
    s_mov_b32 s{sA}, {W_BASE}
    ''')
    for i in range(20):
        A(f'v_bfi_b32 v{X1+i}, s{sB}, v3, v{X1+i}')
    A.wait0(vm=True)
    for i in range(5):
        A(f'buffer_store_dwordx4 {v(X1+4*i,4)}, v{vRO}, {s(R_WS,4)}, s{sA} offen offset:{512*i} sc1')
    A('s_mov_b64 exec, -1')
    A.label('L_nobase')
    stamp(11)
    A(f'''
    s_sub_u32 s{sA}, s{sROLE}, 1
    s_cmp_ge_u32 s{sA}, 2
    s_cbranch_scc1 L_fin
    ''')

    vXW, vXR = 6, 7
    A(f'''
    v_lshlrev_b32 v4, 4, v{vL}
    s_mov_b32 s{sB}, {W_KEYS}
    s_mul_i32 s{sA}, s{sW}, {XAW}
    s_add_u32 s{sA}, s{sA}, {L_XA}
    v_lshrrev_b32 v{vXR}, 4, v{vL}
    v_lshlrev_b32 v{vXR}, 4, v{vXR}
    v_add_u32 v{vXR}, s{sA}, v{vXR}
    ''')
    quadpos(vXW, vL, 2)
    A(f'v_and_b32 v8, 255, v{vXW}')
    A(f'v_add_u32 v{vXW}, s{sA}, v{vXW}')
    A(f'v_add_u32 v8, s{sA}, v8')
    lab = spin_begin('key')
    A(f'buffer_load_dwordx4 v[16:19], v4, {s(R_WS,4)}, s{sB} offen sc1')
    A(f'buffer_load_dwordx4 v[20:23], v4, {s(R_WS,4)}, s{sB} offen offset:1024 sc1')
    A.wait0(vm=True)
    A(f'''
    v_xor_b32 v2, s{sT}, v17
    v_bitop3_b32 v2, v2, v19, s{sT} bitop3:0xf6
    v_bitop3_b32 v2, v2, v21, s{sT} bitop3:0xf6
    v_bitop3_b32 v2, v2, v23, s{sT} bitop3:0xf6
    v_max3_u32 v3, v16, v18, v20
    v_cmp_ne_u32 vcc, 0, v2
    v_max_u32 v3, v3, v22
    ''')
    spin_end(lab)
    for sh in (8, 4, 2, 1):
        A.nop(2)
        A(f'v_max_u32_dpp v3, v3, v3 row_ror:{sh} row_mask:0xf bank_mask:0xf')
    A(f'''
    s_nop 0
    v_readlane_b32 s{sKEY}, v3, 0
    v_readlane_b32 s{sA}, v3, 16
    v_readlane_b32 s{sB}, v3, 32
    v_readlane_b32 s{sC}, v3, 48
    s_max_u32 s{sKEY}, s{sKEY}, s{sA}
    s_max_u32 s{sB}, s{sB}, s{sC}
    s_max_u32 s{sKEY}, s{sKEY}, s{sB}
    s_bfe_u32 s{sSLOT}, s{sKEY}, 0x80003
    s_mul_i32 s{sE}, s{sSLOT}, 2560
    ''')
    stamp(12)
    A(f's_cmp_eq_u32 s{sROLE}, 2')
    A('s_cbranch_scc1 L_f2')

    A(f'''
    s_add_u32 s{sE}, s{sE}, {W_ROWS}
    v_and_b32 v5, 511, v4
    ''')
    lab = spin_begin('row')
    A(f'buffer_load_dwordx4 v[16:19], v4, {s(R_WS,4)}, s{sE} offen sc1')
    A(f'buffer_load_dwordx4 v[20:23], v4, {s(R_WS,4)}, s{sE} offen offset:1024 sc1')
    A(f'buffer_load_dwordx4 v[24:27], v5, {s(R_WS,4)}, s{sE} offen offset:2048 sc1')
    A.wait0(vm=True)
    for i in range(3):
        A(f'v_perm_b32 v{28+2*i}, v{17+4*i}, v{16+4*i}, s{sPHI}')
        A(f'v_perm_b32 v{29+2*i}, v{19+4*i}, v{18+4*i}, s{sPHI}')
        A(f'ds_write_b64 v{vXW if i < 2 else 8}, {v(28+2*i,2)} offset:{512*i}')
    A(f'v_xor_b32 v2, s{sTAG}, v16')
    for r in (19, 20, 23, 24, 27):
        A(f'v_bitop3_b32 v2, v2, v{r}, s{sTAG} bitop3:0xf6')
    A('v_and_b32 v2, 0xffff, v2')
    A('v_cmp_ne_u32 vcc, 0, v2')
    spin_end(lab)

    def gemv(n):
        A.wait0(lg=True)
        A.lg_n = 0
        h = []
        for q in range(n):
            h.append(A.lg(f'ds_read_b128 {v(64+4*q,4)}, v{vXR} offset:{64*q}'))
            if q >= 8:
                A.wait(lg=h[q - 8])
                A(f'v_mfma_f32_16x16x32_bf16 v[40:43], {v(64+4*(q-8),4)}, {a_(4*(q-8),4)}, {"0" if q == 8 else "v[40:43]"}')
        for q in range(n - 8, n):
            A.wait(lg=h[q])
            A(f'v_mfma_f32_16x16x32_bf16 v[40:43], {v(64+4*q,4)}, {a_(4*q,4)}, v[40:43]')

    stamp(13)
    gemv(20)
    A(f'''
    s_lshl_b32 s{sA}, s{sF}, 7
    s_lshl_b32 s{sB}, s{sW}, 5
    s_add_u32 s{sA}, s{sA}, s{sB}
    s_add_u32 s{sA}, s{sA}, {W_HID}
    v_lshlrev_b32 v2, 2, v{vL}
    v_mov_b32 v3, s{sTAG}
    s_nop 1
    v_mul_f32 v44, 0xbfb8aa3b, v40
    v_exp_f32 v44, v44
    v_mul_f32_dpp v45, v41, v40 row_ror:8 row_mask:0xf bank_mask:0xf
    v_add_f32 v44, 1.0, v44
    v_rcp_f32 v44, v44
    s_mov_b64 exec, 0xff
    v_mul_f32 v44, v44, v45
    v_cvt_pk_bf16_f32 v44, v44, v44
    v_and_or_b32 v44, v44, s{sHI}, v3
    buffer_store_dword v44, v2, {s(R_WS,4)}, s{sA} offen sc1
    s_mov_b64 exec, -1
    ''')
    stamp(14)
    A('s_branch L_fin')

    A.label('L_f2')
    A(f'''
    s_lshl_b32 s{sA}, s{sF}, 6
    s_add_u32 s{sE}, s{sE}, s{sA}
    s_add_u32 s{sE}, s{sE}, {W_BASE}
    v_and_b32 v9, 15, v{vL}
    v_lshlrev_b32 v10, 2, v9
    s_add_u32 s{sA}, s{sA}, {L_MOD+5*2560}
    v_add_u32 v2, s{sA}, v10
    ds_read_b32 v50, v2
    s_mul_i32 s{sD_}, s{sW}, 1792
    s_add_u32 s{sD_}, s{sD_}, {W_HID}
    s_cmp_eq_u32 s{sW}, 3
    s_cselect_b32 s{sA}, 31, 47
    v_min_u32 v5, s{sA}, v{vL}
    v_lshlrev_b32 v5, 4, v5
    s_or_b32 s{sA}, s{sF}, s{sW}
    s_cmp_lg_u32 s{sA}, 0
    s_cbranch_scc1 L_noepoch
    v_mov_b32 v2, {W_EPOCH}
    v_mov_b32 v3, s{sT}
    s_mov_b64 exec, 1
    buffer_store_dword v3, v2, {s(R_WS,4)}, 0 offen sc1
    s_mov_b64 exec, -1
    ''')
    A.label('L_noepoch')
    A(f'''
    s_ashr_i32 s{sA}, s{sKEY}, 31
    s_not_b32 s{sA}, s{sA}
    s_or_b32 s{sA}, s{sA}, 0x80000000
    s_xor_b32 s{sA}, s{sA}, s{sKEY}
    v_mov_b32 v51, 0xbfb8aa3b
    v_mul_f32 v51, s{sA}, v51
    v_exp_f32 v51, v51
    s_lshr_b32 s{sA}, s{sSLOT}, 4
    v_add_f32 v51, 1.0, v51
    v_rcp_f32 v51, v51
    s_lshl_b32 s{sA}, s{sA}, 3
    s_and_b32 s{sB}, s{sSLOT}, 7
    s_add_u32 s{sA}, s{sA}, s{sB}
    s_lshl_b32 s{sA}, s{sA}, 4
    s_and_b32 s{sB}, s{sSLOT}, 8
    s_add_u32 s{sA}, s{sA}, s{sB}
    s_and_b32 s{sB}, s{sKEY}, 7
    s_add_u32 s{sA}, s{sA}, s{sB}
    s_mul_i32 s{sA}, s{sA}, 1280
    s_lshl_b32 s{sB}, s{sF}, 5
    s_add_u32 s{sSLOT}, s{sA}, s{sB}
    v_lshlrev_b32 v11, 1, v9
    s_lshl_b32 s{sA}, s{sW}, 6
    s_add_u32 s{sA}, s{sA}, {L_SCR+64}
    v_add_u32 v12, s{sA}, v10
    v_add_u32 v13, {L_SCR+64}, v10
    ''')
    A.wait0(lg=True)
    A('v_mul_f32 v51, v51, v50')
    lab = spin_begin('hid')
    A(f'buffer_load_dword v52, v10, {s(R_WS,4)}, s{sE} offen sc1')
    A(f'buffer_load_dwordx4 v[16:19], v4, {s(R_WS,4)}, s{sD_} offen sc1')
    A(f'buffer_load_dwordx4 v[20:23], v5, {s(R_WS,4)}, s{sD_} offen offset:1024 sc1')
    A.wait0(vm=True)
    for i in range(2):
        A(f'v_perm_b32 v{28+2*i}, v{17+4*i}, v{16+4*i}, s{sPHI}')
        A(f'v_perm_b32 v{29+2*i}, v{19+4*i}, v{18+4*i}, s{sPHI}')
        A(f'ds_write_b64 v{vXW}, {v(28+2*i,2)} offset:{512*i}')
    A(f'v_xor_b32 v2, s{sTAG}, v52')
    A('v_and_b32 v2, 0xff, v2')
    for r in range(16, 24):
        A(f'v_bitop3_b32 v2, v2, v{r}, s{sTAG} bitop3:0xf6')
    A('v_and_b32 v2, 0xffff, v2')
    A('v_cmp_ne_u32 vcc, 0, v2')
    spin_end(lab)
    stamp(13)
    gemv(14)
    A.nop(8)
    A('ds_write_b32 v12, v40')
    A.wait0(lg=True)
    A(f'''
    s_barrier
    s_cmp_lg_u32 s{sW}, 0
    s_cbranch_scc1 L_fin
    ds_read2_b32 v[44:45], v13 offset0:0 offset1:16
    ds_read2_b32 v[46:47], v13 offset0:32 offset1:48
    v_and_b32 v52, 0xffffff00, v52
    s_waitcnt lgkmcnt(0)
    v_add_f32 v44, v44, v45
    v_add_f32 v46, v46, v47
    v_add_f32 v44, v44, v46
    v_fma_f32 v44, v44, v51, v52
    v_cvt_pk_bf16_f32 v44, v44, v44
    s_mov_b64 exec, 0xffff
    buffer_store_short v44, v11, {s(R_OUT,4)}, s{sSLOT} offen sc1
    s_mov_b64 exec, -1
    ''')
    stamp(14)
    A.label('L_fin')
    if stamps:
        A.wait0(vm=True)
        stamp(15)
        A(f'''
        s_lshl_b32 s{sA}, s2, 2
        s_add_u32 s{sA}, s{sA}, s{sW}
        s_lshl_b32 s{sA}, s{sA}, 8
        s_add_u32 s{sA}, s{sA}, {W_STAMP}
        v_lshlrev_b32 v2, 2, v{vL}
        buffer_store_dword v{vSTAMP}, v2, {s(R_WS,4)}, s{sA} offen
        ''')
    A.label('L_end')
    A('s_endpgm')
    return A


def hexf(x):
    import struct
    return hex(struct.unpack('<I', struct.pack('<f', x))[0])


def build(opt):
    A = gen(opt)
    errs = check(A.lines)
    for e in errs:
        print('CHECK:', e, file=sys.stderr)
    ref = open(f'cdna_kernels/{NAME}.s.ref').read().split('\n')
    head = [ln for ln in ref if ln.startswith(';') and '@launch' not in ln and 'Override' not in ln and 'grid=ceil' not in ln]
    k = NAME + '_kernel'
    txt = '\n'.join(head) + f'''
; @launch grid=(256,1,1) block=(256,1,1) lds={L_TOTAL}
.amdgcn_target "amdgcn-amd-amdhsa--gfx950"
.text
.globl {k}
.p2align 8
.type {k},@function
{k}:
''' + A.text() + f'''.section .rodata,"a"
.p2align 6
.amdhsa_kernel {k}
  .amdhsa_next_free_vgpr 512
  .amdhsa_next_free_sgpr 102
  .amdhsa_accum_offset 256
  .amdhsa_group_segment_fixed_size 0
  .amdhsa_kernarg_size 128
  .amdhsa_user_sgpr_count 2
  .amdhsa_user_sgpr_kernarg_segment_ptr 1
  .amdhsa_system_sgpr_workgroup_id_x 1
  .amdhsa_float_denorm_mode_32 3
.end_amdhsa_kernel
'''
    return txt, errs


if __name__ == '__main__':
    out = sys.argv[1]
    opt = {}
    for a in sys.argv[2:]:
        k_, val = a.split('=')
        opt[k_] = int(val)
    txt, errs = build(opt)
    open(out, 'w').write(txt)
    sys.exit(1 if errs else 0)
```

```python
import sys
from asmlib import Asm, v, a_, s, check

NAME = 'adaLN_cond__ssm_conv_h3__moe_arch_mod__prompt'

W_EPOCH = 0
W_FLAG1 = 0x1000
W_FLAGC = 0x1A000
W_KEYS  = 0x20000
W_MOD   = 0x22000
W_HID   = 0x26000
W_ROWS  = 0x30000
W_BASE  = 0xD0000
W_KVT   = 0x200000
W_Y     = 0x500000
W_STAMP = 0x800000
W_SIZE  = 0x900000

L_KC, KCW, KC1 = 0, 8320, 4160
L_XB, XBW = 33280, 4608
L_YS = 51712
L_WB1 = 0
L_WB2 = 81920
L_XA, XAW = 139264, 1280
L_MOD = 144384
L_SCR = 159744
L_TOTAL = 160256

P_Q, P_K, P_V, P_SH, P_SK, P_SD, P_BX, P_WR = 4, 6, 8, 10, 12, 14, 16, 18
P_WG, P_WU, P_WD, P_C, P_WM, P_OUT, P_DBG, P_WS = 20, 22, 24, 26, 28, 30, 32, 34
R_K, R_V, R_WS, R_Q, R_OUT, R_G1, R_G2, R_SH, R_WR = 36, 40, 44, 48, 52, 56, 60, 64, 68
sX, sJ, sW, sT = 72, 73, 74, 75
sC4, sC8, sC12, sC16, sC5120 = 76, 77, 78, 79, 80
sA, sB, sC, sD_, sE = 81, 82, 83, 84, 85
sSD, sKEY, sSLOT = 86, 87, 88
sSPIN, sHI, sPLO, sPHI, sTAG, sF, sROLE, sMI = 90, 91, 92, 93, 94, 95, 96, 97
sST = 98
SOFF = ['0', s(sC4), s(sC8), s(sC12), s(sC16)]
vL = 1
vSTAMP = 255
SPIN = 0x20000


def gen(opt):
    FS1 = opt.get('fs1', 16)
    FSC = opt.get('fsc', 16)
    PD = opt.get('pd', 8)
    NB = PD + 2
    stamps = opt.get('stamps', False)
    A = Asm()

    def stamp(k):
        if not stamps:
            return
        if opt.get('leak') is not None and k != opt['leak']:
            return
        A(f's_memrealtime {s(sST,2)}')
        A.wait0(lg=True)
        A(f'v_writelane_b32 v{vSTAMP}, s{sST}, {k}')

    def srd(r, p, size):
        A(f's_mov_b64 {s(r,2)}, {s(p,2)}')
        A(f's_mov_b32 s{r+2}, {size}')
        A(f's_mov_b32 s{r+3}, 0x20000')

    def spin_begin(name):
        lab = A.newlabel(name)
        A(f's_mov_b32 s{sSPIN}, {SPIN}')
        A.label(lab)
        return lab

    def spin_end(lab):
        ok = lab + '_ok'
        A(f's_cbranch_vccz {ok}')
        A(f's_sub_u32 s{sSPIN}, s{sSPIN}, 1')
        A(f's_cbranch_scc0 {lab}')
        A.label(ok)

    def unpack(dst, src):
        A(f'v_lshlrev_b32 v{dst}, 16, v{src}')
        A(f'v_and_b32 v{dst+1}, s{sHI}, v{src}')

    def red32(rs, tmp, op='add_f32'):
        pad = max(0, 2 - (len(rs) - 1))
        for sh in (8, 4, 2, 1):
            A.nop(pad if sh != 8 else 2)
            for r in rs:
                A(f'v_{op}_dpp v{r}, v{r}, v{r} row_ror:{sh} row_mask:0xf bank_mask:0xf')
        for i, r in enumerate(rs):
            A(f'v_mov_b32 v{tmp+i}, v{r}')
        A.nop(2)
        for i, r in enumerate(rs):
            A(f'v_permlane16_swap_b32 v{tmp+i}, v{r}')
        for i, r in enumerate(rs):
            A(f'v_{op} v{r}, v{tmp+i}, v{r}')

    def sum20(dst, src, tmp):
        for i in range(5):
            A(f'v_pk_add_f32 {v(tmp+2*i,2)}, {v(src+4*i,2)}, {v(src+4*i+2,2)}')
        A(f'v_pk_add_f32 {v(tmp,2)}, {v(tmp,2)}, {v(tmp+2,2)}')
        A(f'v_pk_add_f32 {v(tmp+4,2)}, {v(tmp+4,2)}, {v(tmp+6,2)}')
        A(f'v_pk_add_f32 {v(tmp,2)}, {v(tmp,2)}, {v(tmp+8,2)}')
        A(f'v_pk_add_f32 {v(tmp,2)}, {v(tmp,2)}, {v(tmp+4,2)}')
        A(f'v_add_f32 v{dst}, v{tmp}, v{tmp+1}')

    def dots20(items):
        for i in range(10):
            for (d, x, y, t) in items:
                if i == 0:
                    A(f'v_pk_mul_f32 {v(t,2)}, {v(x,2)}, {v(y,2)}')
                else:
                    A(f'v_pk_fma_f32 {v(t,2)}, {v(x+2*i,2)}, {v(y+2*i,2)}, {v(t,2)}')
        for (d, x, y, t) in items:
            A(f'v_add_f32 v{d}, v{t}, v{t+1}')

    def quadpos(dst, src, tmp):
        A(f'v_and_b32 v{tmp}, 1, v{src}')
        A(f'v_bfe_u32 v{dst}, v{src}, 1, 1')
        A(f'v_lshl_or_b32 v{dst}, v{tmp}, 1, v{dst}')
        A(f'v_and_b32 v{tmp}, -4, v{src}')
        A(f'v_or_b32 v{dst}, v{tmp}, v{dst}')
        A(f'v_lshlrev_b32 v{dst}, 3, v{dst}')

    def dma_loop(voff, r, n, gstep, lds0, g0=None):
        lab = A.newlabel('dma')
        A(f's_mov_b32 m0, {lds0}')
        A(f's_mov_b32 s{sA}, {g0 if g0 is not None else 0}')
        A(f's_mov_b32 s{sB}, {n}')
        A.label(lab)
        A(f'buffer_load_dwordx4 v{voff}, {s(r,4)}, s{sA} offen lds')
        A(f's_add_u32 s{sA}, s{sA}, {gstep}')
        A(f's_add_u32 m0, m0, 1024')
        A(f's_sub_u32 s{sB}, s{sB}, 1')
        A(f's_cmp_lg_u32 s{sB}, 0')
        A(f's_cbranch_scc1 {lab}')

    A('s_cmp_ge_u32 s2, 256')
    A('s_cbranch_scc1 L_end')
    A('s_load_dwordx16 s[4:19], s[0:1], 0')
    A('s_load_dwordx16 s[20:35], s[0:1], 64')
    if stamps:
        A(f's_memrealtime {s(sST,2)}')
        A(f'v_mov_b32 v{vSTAMP}, 0')
    A(f'v_lshrrev_b32 v2, 6, v0')
    A(f'v_and_b32 v{vL}, 63, v0')
    A(f's_and_b32 s{sX}, s2, 7')
    A(f'v_readfirstlane_b32 s{sW}, v2')
    A(f's_lshr_b32 s{sJ}, s2, 3')
    for r, c in ((sC4, 4096), (sC8, 8192), (sC12, 12288), (sC16, 16384), (sC5120, 5120),
                 (sHI, 0xffff0000), (sPLO, 0x05040100), (sPHI, 0x07060302)):
        A(f's_mov_b32 s{r}, {hex(c)}')
    A(f'''
    s_mul_i32 s{sA}, s{sX}, 7
    s_add_u32 s{sA}, s{sA}, s{sJ}
    s_cmp_lt_u32 s{sJ}, 23
    s_cselect_b32 s{sB}, 20, 25
    s_sub_u32 s{sF}, s{sA}, s{sB}
    s_cmp_lt_u32 s{sF}, 54
    s_cselect_b32 s{sROLE}, 1, 3
    s_sub_u32 s{sA}, s2, 120
    s_cmp_lt_u32 s{sJ}, 23
    s_cselect_b32 s{sMI}, s{sA}, 99
    s_mul_i32 s{sA}, s{sX}, 5
    s_add_u32 s{sA}, s{sA}, s{sJ}
    s_sub_u32 s{sA}, s{sA}, 23
    s_sub_u32 s{sB}, s2, 184
    s_cmp_lt_u32 s{sB}, 40
    s_cselect_b32 s{sF}, s{sA}, s{sF}
    s_cselect_b32 s{sMI}, s{sB}, s{sMI}
    s_cselect_b32 s{sROLE}, 2, s{sROLE}
    s_cmp_lt_u32 s{sJ}, 20
    s_cselect_b32 s{sROLE}, 0, s{sROLE}
    ''')
    vM, vH, vS, vT = 4, 5, 6, 7
    A(f'''
    v_and_b32 v2, 7, v{vL}
    v_lshrrev_b32 v3, 3, v{vL}
    s_mul_i32 s{sA}, s{sJ}, 81920
    s_mul_i32 s{sB}, s{sX}, 160
    s_lshl_b32 s{sC}, s{sW}, 6
    s_add_u32 s{sA}, s{sA}, s{sB}
    s_add_u32 s{sA}, s{sA}, s{sC}
    v_mul_u32_u24 v{vM}, 10240, v2
    v_lshl_add_u32 v{vM}, v3, 3, v{vM}
    v_add_u32 v{vM}, s{sA}, v{vM}
    v_subrev_u32 v{vH}, 3840, v{vM}
    s_add_u32 s{sB}, s{sB}, s{sC}
    s_lshl_b32 s{sB}, s{sB}, 2
    v_lshlrev_b32 v{vS}, 5, v3
    v_add_u32 v{vS}, s{sB}, v{vS}
    s_lshl_b32 s{sB}, s{sB}, 9
    s_lshl_b32 s{sC}, s{sJ}, 7
    s_add_u32 s{sB}, s{sB}, s{sC}
    s_add_u32 s{sB}, s{sB}, {W_KVT}
    v_lshlrev_b32 v{vT}, 14, v3
    v_lshl_add_u32 v{vT}, v2, 4, v{vT}
    v_add_u32 v{vT}, s{sB}, v{vT}
    ''')
    A.wait0(lg=True)
    if stamps:
        A(f'v_writelane_b32 v{vSTAMP}, s{sST}, 0')
    srd(R_K, P_K, 2621440)
    srd(R_V, P_V, 2621440)
    srd(R_SH, P_SH, 5120)
    srd(R_WS, P_WS, W_SIZE)
    srd(R_Q, P_Q, 2621440)
    srd(R_OUT, P_OUT, 2621440)
    srd(R_WR, P_WR, 1280)
    A(f's_load_dword s{sT}, {s(P_WS,2)}, {W_EPOCH}')
    A(f'''
    s_mul_i32 s{sA}, s{sX}, 80
    s_lshl_b32 s{sB}, s{sJ}, 2
    s_add_u32 s{sA}, s{sA}, s{sB}
    s_add_u32 s{sA}, s{sA}, s{sW}
    s_min_u32 s{sA}, s{sA}, 639
    s_lshr_b32 s{sA}, s{sA}, 1
    s_lshl_b32 s{sA}, s{sA}, 2
    s_load_dword s{sSD}, {s(P_SD,2)}, s{sA}
    s_cmp_eq_u32 s{sW}, 3
    s_cbranch_scc1 L_loader
    ''')

    KR, VR, SR, WF, KF, VF, KS, KO = 16, 38, 54, 64, 80, 124, 156, 188
    A(f's_cmp_eq_u32 s{sW}, 2')
    A(f's_cselect_b32 exec_hi, 0, -1')
    A.vm_n = 0
    A.vm(f'buffer_load_dwordx4 {v(SR,4)}, v{vS}, {s(R_SH,4)}, 0 offen')
    hS = A.vm(f'buffer_load_dwordx4 {v(SR+4,4)}, v{vS}, {s(R_SH,4)}, 0 offen offset:16')
    hK = []
    for i in range(3):
        hK.append(A.vm(f'buffer_load_dwordx2 {v(KR+2*i,2)}, v{vH}, {s(R_K,4)}, 0 offen offset:{1280*i}'))
    for i in range(8):
        so = '0' if i < 4 else s(sC5120)
        hK.append(A.vm(f'buffer_load_dwordx2 {v(KR+6+2*i,2)}, v{vM}, {s(R_K,4)}, {so} offen offset:{1280*(i&3)}'))
    hV = []
    for i in range(8):
        so = '0' if i < 4 else s(sC5120)
        hV.append(A.vm(f'buffer_load_dwordx2 {v(VR+2*i,2)}, v{vM}, {s(R_V,4)}, {so} offen offset:{1280*(i&3)}'))
    A.wait(vm=hS)
    for c in range(4):
        A(f'v_lshlrev_b32 v{WF+c}, 16, v{SR+2*c}')
        A(f'v_and_b32 v{WF+4+c}, s{sHI}, v{SR+2*c}')
        A(f'v_lshlrev_b32 v{WF+8+c}, 16, v{SR+2*c+1}')
        A(f'v_and_b32 v{WF+12+c}, s{sHI}, v{SR+2*c+1}')
    for i in range(11):
        if i in (0, 4, 8):
            A.wait(vm=hK[min(i + 3, 10)])
        unpack(KF + 4 * i, KR + 2 * i)
        unpack(KF + 4 * i + 2, KR + 2 * i + 1)
        t = i - 3
        if t >= 0:
            for jt in (3, 2, 1, 0):
                for p in range(2):
                    d = v(KS + 4 * t + 2 * p, 2)
                    x = v(KF + 4 * (t + 3 - jt) + 2 * p, 2)
                    w = v(WF + 4 * jt + 2 * p, 2)
                    if jt == 3:
                        A(f'v_pk_mul_f32 {d}, {x}, {w}')
                    else:
                        A(f'v_pk_fma_f32 {d}, {x}, {w}, {d}')
    stamp(1)
    for t in range(8):
        if t in (0, 4):
            A.wait(vm=hV[t + 3])
        unpack(VF + 4 * t, VR + 2 * t)
        unpack(VF + 4 * t + 2, VR + 2 * t + 1)
        for p in range(2):
            A(f'v_pk_mul_f32 {v(KS+4*t+2*p,2)}, {v(KS+4*t+2*p,2)}, {v(VF+4*t+2*p,2)}')
    for c in range(4):
        for m in range(4):
            A(f'v_cvt_pk_bf16_f32 v{KO+4*c+m}, v{KS+4*(7-2*m)+c}, v{KS+4*(6-2*m)+c}')
        A.vm(f'buffer_store_dwordx4 {v(KO+4*c,4)}, v{vT}, {s(R_WS,4)}, {SOFF[c]} offen sc1')
    A('s_mov_b64 exec, -1')
    A.wait0(lg=True)
    A(f's_add_u32 s{sT}, s{sT}, 1')
    A(f's_and_b32 s{sTAG}, s{sT}, 0xffff')
    stamp(2)
    vFA, vFV = 8, 9
    A(f'''
    s_mul_i32 s{sA}, s{sX}, 3
    s_add_u32 s{sA}, s{sA}, s{sW}
    s_lshl_b32 s{sA}, s{sA}, 5
    s_add_u32 s{sA}, s{sA}, s{sJ}
    s_mul_i32 s{sA}, s{sA}, {FS1}
    s_add_u32 s{sA}, s{sA}, {W_FLAG1}
    v_mov_b32 v{vFA}, s{sA}
    v_mov_b32 v{vFV}, s{sT}
    s_cmp_eq_u32 s{sROLE}, 0
    s_cbranch_scc1 L_conv
    ''')

    def publish_flag():
        A.wait0(vm=True)
        A('s_mov_b64 exec, 1')
        A(f'buffer_store_dword v{vFV}, v{vFA}, {s(R_WS,4)}, 0 offen sc1')
        A('s_mov_b64 exec, -1')

    publish_flag()
    stamp(3)
    A('s_branch L_n1')

    A.label('L_loader')
    A(f's_cmp_lg_u32 s{sROLE}, 0')
    A('s_cbranch_scc1 L_loader_n')
    srd(R_G1, P_SK, 2621440)
    vK, vP0, vZ, vY, vD = 4, 5, 8, 6, 7
    A(f'''
    s_mul_i32 s{sA}, s{sX}, 20
    s_add_u32 s{sA}, s{sA}, s{sJ}
    s_lshl_b32 s{sB}, s{sA}, 14
    v_lshlrev_b32 v{vD}, 4, v{vL}
    v_add_u32 v{vK}, s{sB}, v{vD}
    v_add_u32 v{vP0}, -4, v{vK}
    v_bfrev_b32 v2, 1
    v_cmp_eq_u32 vcc, 0, v{vL}
    s_nop 1
    v_cndmask_b32 v{vP0}, v{vP0}, v2, vcc
    ''')
    A.vm_n = 0
    hk = []
    for cw in range(4):
        for i in range(4):
            idx = cw * 4 + i
            A.vm(f'buffer_load_dwordx4 {v(16+4*idx,4)}, v{vK}, {s(R_G1,4)}, {SOFF[cw]} offen offset:{1024*i}')
            if i == 0:
                hk.append(A.vm(f'buffer_load_dword v{80+idx}, v{vP0}, {s(R_G1,4)}, {SOFF[cw]} offen'))
            else:
                hk.append(A.vm(f'buffer_load_dword v{80+idx}, v{vK}, {s(R_G1,4)}, {SOFF[cw]} offen offset:{1024*i-4}'))
    A(f'''
    s_lshl_b32 s{sB}, s{sA}, 7
    s_add_u32 s{sB}, s{sB}, {W_Y}
    v_lshrrev_b32 v2, 3, v{vL}
    v_and_b32 v3, 7, v{vL}
    v_mul_u32_u24 v{vY}, 20480, v2
    v_lshl_add_u32 v{vY}, v3, 4, v{vY}
    v_add_u32 v{vY}, s{sB}, v{vY}
    v_mov_b32 v12, -1
    v_mov_b32 v13, -1
    v_mov_b32 v14, -1
    v_mov_b32 v15, -1
    s_mov_b32 s{sC}, 0
    ''')
    for i in range(16):
        A.vm(f'buffer_store_dwordx4 v[12:15], v{vY}, {s(R_WS,4)}, s{sC} offen sc1')
        A(f's_add_u32 s{sC}, s{sC}, 163840')
    A.wait0(lg=True)
    A(f's_add_u32 s{sT}, s{sT}, 1')
    A(f's_and_b32 s{sTAG}, s{sT}, 0xffff')
    for i in range(4):
        A(f'v_mov_b32 v{vZ+i}, 0')
    A(f'''
    v_lshrrev_b32 v2, 5, v{vL}
    v_and_b32 v3, 31, v{vL}
    v_mul_u32_u24 v2, {XBW}, v2
    v_lshl_add_u32 v2, v3, 4, v2
    ds_write_b128 v2, {v(vZ,4)} offset:{L_XB}
    ds_write_b128 v2, {v(vZ,4)} offset:{L_XB+2*XBW}
    v_bfe_u32 v2, v{vL}, 1, 3
    v_and_b32 v3, 1, v{vL}
    v_mul_u32_u24 v2, {KC1}, v2
    v_lshl_add_u32 v2, v3, 4, v2
    ds_write_b128 v2, {v(vZ,4)} offset:{L_KC}
    ''')
    for cw in range(4):
        for i in range(4):
            idx = cw * 4 + i
            d, t = 16 + 4 * idx, 96 + 4 * (idx & 3)
            A.wait(vm=hk[idx])
            A(f'ds_write_b128 v{vD}, {v(d,4)} offset:{L_KC+cw*KCW+32+1024*i}')
            A(f'v_alignbyte_b32 v{t}, v{d}, v{80+idx}, 2')
            for m in range(1, 4):
                A(f'v_alignbyte_b32 v{t+m}, v{d+m}, v{d+m-1}, 2')
            A(f'ds_write_b128 v{vD}, {v(t,4)} offset:{L_KC+cw*KCW+KC1+32+1024*i}')
    stamp(2)
    A(f'''
    s_mul_i32 s{sA}, s{sA}, {FSC}
    s_add_u32 s{sA}, s{sA}, {W_FLAGC}
    v_mov_b32 v{vFA}, s{sA}
    v_mov_b32 v{vFV}, s{sT}
    ''')
    A.wait0(lg=True)

    A.label('L_conv')
    vA0, vB, vAD, vYW, vYR, vYG = 10, 14, 16, 20, 21, 22
    A(f'''
    v_and_b32 v2, 15, v{vL}
    v_lshrrev_b32 v3, 4, v{vL}
    v_lshlrev_b32 v4, 3, v3
    v_sub_u32 v4, v2, v4
    v_add_u32 v4, 25, v4
    v_and_b32 v5, 1, v4
    v_mul_u32_u24 v5, {KC1+2}, v5
    v_lshl_add_u32 v5, v4, 1, v5
    s_mul_i32 s{sA}, s{sW}, {KCW}
    v_add_u32 v{vA0}, s{sA}, v5
    v_add_u32 v{vA0+1}, 1024, v{vA0}
    v_add_u32 v{vA0+2}, 2048, v{vA0}
    v_add_u32 v{vA0+3}, 3072, v{vA0}
    s_barrier
    ''')
    NPRE = opt.get('npre', 40)

    def afrag(q):
        o = 16 * (q & 15)
        A(f'ds_read2_b32 {a_(4*q,2)}, v{vA0+(q>>4)} offset0:{o} offset1:{o+1}')
        A(f'ds_read2_b32 {a_(4*q+2,2)}, v{vA0+(q>>4)} offset0:{o+2} offset1:{o+3}')
    for q in range(NPRE):
        afrag(q)
    publish_flag()
    stamp(3)
    for q in range(NPRE, 64):
        afrag(q)
    A(f'''
    v_sub_u32 v4, 16, v4
    s_bitcmp1_b32 s{sW}, 0
    s_cselect_b32 s{sA}, 16, 0
    s_lshr_b32 s{sSD}, s{sSD}, s{sA}
    s_and_b32 s{sSD}, s{sSD}, 0xffff
    v_and_b32 v5, 1, v4
    v_lshlrev_b32 v5, 4, v5
    v_lshlrev_b32 v5, v5, s{sSD}
    v_ashrrev_i32 v4, 1, v4
    ''')
    for m in range(4):
        A(f'v_cmp_eq_u32 vcc, {m}, v4')
        A.nop(2)
        A(f'v_cndmask_b32 v{vAD+m}, 0, v5, vcc')
    A(f'''
    s_mul_i32 s{sA}, s{sW}, {XBW}
    s_add_u32 s{sA}, s{sA}, {L_XB+32}
    v_lshlrev_b32 v{vB}, 5, v2
    v_lshl_add_u32 v{vB}, v3, 4, v{vB}
    v_add_u32 v{vB}, s{sA}, v{vB}
    s_add_u32 m0, s{sA}, 480
    s_lshl_b32 s{sA}, s{sW}, 10
    v_lshlrev_b32 v{vYW}, 5, v2
    v_lshl_add_u32 v{vYW}, v3, 3, v{vYW}
    v_add_u32 v{vYW}, s{sA}, v{vYW}
    v_lshlrev_b32 v{vYR}, 2, v0
    v_add_u32 v{vYR}, {L_YS}, v{vYR}
    s_mul_i32 s{sA}, s{sX}, 20
    s_add_u32 s{sA}, s{sA}, s{sJ}
    s_lshl_b32 s{sB}, s{sA}, 7
    s_add_u32 s{sB}, s{sB}, {W_Y}
    v_lshrrev_b32 v4, 3, v0
    v_and_b32 v5, 7, v0
    v_mul_u32_u24 v{vYG}, 20480, v4
    v_lshl_add_u32 v{vYG}, v5, 4, v{vYG}
    v_add_u32 v{vYG}, s{sB}, v{vYG}
    s_lshl_b32 s{sA}, s{sA}, 14
    s_lshl_b32 s{sB}, s{sW}, 12
    s_add_u32 s{sA}, s{sA}, s{sB}
    s_add_u32 s{sA}, s{sA}, {W_KVT}
    v_lshlrev_b32 v6, 4, v{vL}
    v_add_u32 v6, s{sA}, v6
    s_mul_i32 s{sA}, s{sX}, 3
    s_lshr_b32 s{sB}, s{sJ}, 3
    s_add_u32 s{sA}, s{sA}, s{sB}
    s_mul_i32 s{sA}, s{sA}, {32*FS1}
    s_add_u32 s{sA}, s{sA}, {W_FLAG1}
    v_and_b32 v7, 31, v{vL}
    v_mul_u32_u24 v7, {FS1}, v7
    v_add_u32 v7, s{sA}, v7
    ''')
    stamp(4)
    lab = spin_begin('kv')
    A(f'buffer_load_dword v4, v7, {s(R_WS,4)}, 0 offen sc1')
    A.wait0(vm=True)
    A(f'v_cmp_ne_u32 vcc, s{sT}, v4')
    spin_end(lab)
    stamp(5)
    A.vm_n = 0
    hx = [A.vm(f'buffer_load_dwordx4 v6, {s(R_WS,4)}, 0 offen offset:{1024*i} sc1 lds') for i in range(4)]
    A.wait0(lg=True)
    A.lg_n = 0

    BR, ACC, YP, YQ, YO = 32, 96, 112, 120, 124
    steps = []
    for p in range(4):
        t0, t1 = 2 * p, 2 * p + 1
        for b in range(t1 + 1):
            for r in range(8):
                mf = []
                if b <= t0:
                    mf.append((0, 8 * (t0 - b) + r))
                mf.append((1, 8 * (t1 - b) + r))
                if r == 0 and b == t0:
                    mf.append((0, -1))
                if r == 0 and b == t1:
                    mf.append((1, -1))
                steps.append(dict(p=p, b=b, r=r, w=8 * b - r, mf=mf))
    nst = len(steps)
    ev = {}
    pend = {}
    for p in range(4):
        last = max(i for i, st in enumerate(steps) if st['p'] == p)
        ev.setdefault(last - 8 + 6, []).append(('cvt', p, 0))
        ev.setdefault(last + 3, []).append(('cvt', p, 1))
        ev.setdefault(last + 7, []).append(('bar', p))
        ev.setdefault(last + 11, []).append(('st', p))
    hB = {}
    landed = [-1]

    def bread(i):
        st = steps[i]
        blk = st['b'] >> 1
        if blk > landed[0]:
            A.wait(vm=hx[blk])
            landed[0] = blk
        hB[i] = A.lg(f'ds_read_b128 {v(BR+4*(i%NB),4)}, v{vB} offset:{64*(st["w"]+7)}')

    def event(e):
        p = e[1]
        if e[0] == 'cvt':
            acc = ACC + 8 * (p & 1) + 4 * e[2]
            d = YP + 2 * e[2]
            A(f'v_cvt_pk_bf16_f32 v{d}, v{acc}, v{acc+1}')
            A(f'v_cvt_pk_bf16_f32 v{d+1}, v{acc+2}, v{acc+3}')
            pend[p] = A.lg(f'ds_write_b64 v{vYW}, {v(d,2)} offset:{L_YS+4096*p+512*e[2]}')
        elif e[0] == 'bar':
            A.wait(lg=pend[p])
            A('s_barrier')
            A.lg(f'ds_read2st64_b32 {v(YQ,2)}, v{vYR} offset0:{16*p} offset1:{16*p+4}')
            pend[p] = A.lg(f'ds_read2st64_b32 {v(YQ+2,2)}, v{vYR} offset0:{16*p+8} offset1:{16*p+12}')
        else:
            A.wait(lg=pend[p])
            A(f'v_perm_b32 v{YO}, v{YQ+1}, v{YQ}, s{sPLO}')
            A(f'v_perm_b32 v{YO+1}, v{YQ+3}, v{YQ+2}, s{sPLO}')
            A(f'v_perm_b32 v{YO+2}, v{YQ+1}, v{YQ}, s{sPHI}')
            A(f'v_perm_b32 v{YO+3}, v{YQ+3}, v{YQ+2}, s{sPHI}')
            A(f's_mov_b32 s{sA}, {655360*p}')
            A.vm(f'buffer_store_dwordx4 {v(YO,4)}, v{vYG}, {s(R_WS,4)}, s{sA} offen sc1')

    for i in range(PD):
        bread(i)
    started = set()
    for i, st in enumerate(steps):
        if i + PD < nst:
            bread(i + PD)
        A.wait(lg=hB[i])
        for (k, q) in st['mf']:
            acc = v(ACC + 8 * (st['p'] & 1) + 4 * k, 4)
            src = v(vAD, 4) if q < 0 else a_(4 * q, 4)
            c = acc if (st['p'], k) in started else '0'
            started.add((st['p'], k))
            A(f'v_mfma_f32_16x16x32_bf16 {acc}, {src}, {v(BR+4*(i%NB),4)}, {c}')
        for e in ev.pop(i, []):
            event(e)
    A.nop(8)
    for i in sorted(ev):
        for e in ev[i]:
            event(e)
    stamp(6)
    A('s_branch L_ln')

    A.label('L_loader_n')
    A.wait0(lg=True)
    A(f's_add_u32 s{sT}, s{sT}, 1')
    A(f's_and_b32 s{sTAG}, s{sT}, 0xffff')
    A(f's_cmp_ge_u32 s{sMI}, 60')
    A('s_cbranch_scc1 L_loader_nomod')
    srd(R_G1, P_C, 1280)
    srd(R_G2, P_WM, 4915200)
    A(f'''
    v_lshlrev_b32 v4, 3, v{vL}
    v_and_b32 v5, 31, v{vL}
    v_lshlrev_b32 v6, 3, v5
    buffer_load_dwordx2 v[16:17], v4, {s(R_G1,4)}, 0 offen
    buffer_load_dwordx2 v[18:19], v4, {s(R_G1,4)}, 0 offen offset:512
    buffer_load_dwordx2 v[20:21], v6, {s(R_G1,4)}, 0 offen offset:1024
    v_lshrrev_b32 v2, 3, v{vL}
    v_and_b32 v3, 6, v2
    v_xor_b32 v3, v3, v{vL}
    v_and_b32 v3, 7, v3
    v_mul_u32_u24 v7, 7680, v2
    v_lshl_add_u32 v7, v3, 4, v7
    s_lshl_b32 s{sA}, s{sMI}, 7
    v_add_u32 v7, s{sA}, v7
    ''')
    A.wait0(vm=True)
    dma_loop(7, R_G2, 80, 61440, L_WB1)
    for i in range(6):
        unpack(24 + 2 * i, 16 + i)
    for i in range(12):
        A(f'v_mul_f32 v{40+i}, 0xbfb8aa3b, v{24+i}')
    for i in range(12):
        A(f'v_exp_f32 v{40+i}, v{40+i}')
    for i in range(12):
        A(f'v_add_f32 v{40+i}, 1.0, v{40+i}')
    for i in range(12):
        A(f'v_rcp_f32 v{40+i}, v{40+i}')
    for i in range(12):
        A(f'v_mul_f32 v{24+i}, v{24+i}, v{40+i}')
    for i in range(6):
        A(f'v_cvt_pk_bf16_f32 v{16+i}, v{24+2*i}, v{25+2*i}')
    quadpos(4, vL, 2)
    A(f'v_add_u32 v4, {L_XA}, v4')
    quadpos(6, 5, 2)
    A(f'v_add_u32 v6, {L_XA}, v6')
    A(f'''
    ds_write_b64 v4, v[16:17]
    ds_write_b64 v4, v[18:19] offset:512
    ds_write_b64 v6, v[20:21] offset:1024
    s_cmp_eq_u32 s{sROLE}, 2
    s_cbranch_scc1 L_loader_f2
    ''')
    A.wait0(vm=True, lg=True)
    A('s_branch L_n1')
    A.label('L_loader_f2')
    srd(R_G1, P_WD, 2211840)
    A(f'''
    v_lshrrev_b32 v2, 1, v{vL}
    v_and_b32 v3, 1, v{vL}
    v_mul_u32_u24 v7, 1280, v2
    v_lshl_add_u32 v7, v3, 4, v7
    s_lshl_b32 s{sA}, s{sF}, 5
    v_add_u32 v7, s{sA}, v7
    v_mov_b32 v12, 0
    v_mov_b32 v13, 0
    v_mov_b32 v14, 0
    v_mov_b32 v15, 0
    v_lshlrev_b32 v2, 4, v{vL}
    v_add_u32 v2, {L_WB2+54*1024}, v2
    ds_write_b128 v2, v[12:15]
    ds_write_b128 v2, v[12:15] offset:1024
    ''')
    dma_loop(7, R_G1, 54, 40960, L_WB2)
    A('s_waitcnt vmcnt(54) lgkmcnt(0)')
    A('s_branch L_n1')

    def f1_addr():
        srd(R_G1, P_WG, 2211840)
        srd(R_G2, P_WU, 2211840)
        A(f'''
        v_lshrrev_b32 v2, 2, v{vL}
        v_bfe_u32 v3, v{vL}, 4, 1
        v_xor_b32 v3, v3, v{vL}
        v_and_b32 v3, 3, v3
        v_mul_u32_u24 v6, 3456, v2
        s_lshl_b32 s{sA}, s{sF}, 6
        v_add_u32 v6, s{sA}, v6
        v_xor_b32 v2, 2, v3
        v_lshl_add_u32 v7, v2, 4, v6
        v_lshl_add_u32 v6, v3, 4, v6
        ''')

    A.label('L_loader_nomod')
    A(f's_cmp_lg_u32 s{sROLE}, 1')
    A('s_cbranch_scc1 L_n1')
    f1_addr()
    dma_loop(6, R_G1, 40, 55296, L_WB1)
    dma_loop(7, R_G2, 40, 55296, L_WB1 + 40960)

    A.label('L_n1')
    vKH, vRS, vCC, vAV = 10, 11, 12, 13
    A(f'''
    v_lshrrev_b32 v{vKH}, 4, v{vL}
    v_bfe_u32 v{vRS}, v{vL}, 2, 3
    v_and_b32 v{vCC}, 3, v{vL}
    v_lshrrev_b32 v2, 5, v{vL}
    v_lshl_add_u32 v14, v2, 4, v{vRS}
    s_barrier
    s_cmp_ge_u32 s{sMI}, 60
    s_cbranch_scc1 L_n3
    ''')
    stamp(4)
    A(f'''
    v_lshrrev_b32 v2, 1, v{vRS}
    v_xor_b32 v2, s{sW}, v2
    v_lshlrev_b32 v4, 7, v14
    v_lshl_add_u32 v4, v2, 5, v4
    v_lshl_add_u32 v4, v{vCC}, 3, v4
    v_add_u32 v5, 40960, v4
    v_lshlrev_b32 v{vAV}, 4, v{vKH}
    v_add_u32 v{vAV}, {L_XA}, v{vAV}
    ''')
    A.lg_n = 0
    hq = []
    for q in range(20):
        base, o = (4, q * 4096) if q < 10 else (5, (q - 10) * 4096)
        A.lg(f'ds_read_b128 {v(16+4*q,4)}, v{vAV} offset:{64*q}')
        A.lg(f'ds_read_b64_tr_b16 {v(96+4*q,2)}, v{base} offset:{o}')
        hq.append(A.lg(f'ds_read_b64_tr_b16 {v(98+4*q,2)}, v{base} offset:{o+1024}'))
        if q >= 4:
            A.wait(lg=hq[q - 4])
            A(f'v_mfma_f32_16x16x32_bf16 v[180:183], {v(16+4*(q-4),4)}, {v(96+4*(q-4),4)}, {"0" if q == 4 else "v[180:183]"}')
    for q in range(16, 20):
        A.wait(lg=hq[q])
        A(f'v_mfma_f32_16x16x32_bf16 v[180:183], {v(16+4*q,4)}, {v(96+4*q,4)}, v[180:183]')
    A(f'''
    s_barrier
    s_lshl_b32 s{sA}, s{sMI}, 8
    s_lshl_b32 s{sB}, s{sW}, 6
    s_add_u32 s{sA}, s{sA}, s{sB}
    s_add_u32 s{sA}, s{sA}, {W_MOD}
    v_lshlrev_b32 v2, 2, v{vL}
    v_add_u32 v2, s{sA}, v2
    v_mov_b32 v3, s{sTAG}
    s_nop 0
    v_cvt_pk_bf16_f32 v4, v180, v180
    v_and_or_b32 v4, v4, s{sHI}, v3
    s_mov_b64 exec, 0xffff
    buffer_store_dword v4, v2, {s(R_WS,4)}, 0 offen sc1
    s_mov_b64 exec, -1
    ''')
    stamp(5)
    A(f's_cmp_lg_u32 s{sROLE}, 1')
    A('s_cbranch_scc1 L_n3')
    f1_addr()
    A(f's_mul_i32 s{sC}, s{sW}, 10240')
    A(f's_mul_i32 s{sD_}, s{sW}, 552960')
    dma_loop(6, R_G1, 10, 55296, s(sC), s(sD_))
    A(f's_add_u32 s{sC}, s{sC}, 40960')
    dma_loop(7, R_G2, 10, 55296, s(sC), s(sD_))
    A.label('L_n3')
    A.wait0(vm=True)
    A('s_barrier')
    A(f's_cmp_eq_u32 s{sROLE}, 2')
    A('s_cbranch_scc1 L_n3_f2')
    A(f'''
    v_lshrrev_b32 v2, 1, v{vCC}
    v_and_b32 v3, 2, v{vCC}
    v_and_b32 v4, 1, v{vKH}
    v_xor_b32 v3, v3, v4
    v_xor_b32 v3, s{sW}, v3
    v_mul_u32_u24 v4, 40960, v2
    v_lshl_add_u32 v4, v14, 6, v4
    v_lshl_add_u32 v4, v3, 4, v4
    v_and_b32 v2, 1, v{vCC}
    v_lshl_add_u32 v4, v2, 3, v4
    ''')
    for q in range(20):
        A(f'ds_read_b64_tr_b16 {a_(4*q,2)}, v4 offset:{2048*q}')
        A(f'ds_read_b64_tr_b16 {a_(4*q+2,2)}, v4 offset:{2048*q+512}')
    A('s_branch L_n4')
    A.label('L_n3_f2')
    A(f'''
    s_mul_i32 s{sA}, s{sW}, {448*32}
    s_add_u32 s{sA}, s{sA}, {L_WB2}
    v_lshlrev_b32 v4, 5, v14
    v_lshl_add_u32 v4, v{vCC}, 3, v4
    v_add_u32 v4, s{sA}, v4
    ''')
    for q in range(14):
        A(f'ds_read_b64_tr_b16 {a_(4*q,2)}, v4 offset:{1024*q}')
        A(f'ds_read_b64_tr_b16 {a_(4*q+2,2)}, v4 offset:{1024*q+256}')
    A.label('L_n4')
    A.wait0(lg=True)
    stamp(6)

    A.label('L_ln')
    QR, WRR, YR, MR, FC = 16, 26, 36, 46, 62
    QF, GH, CW, C1, SB, GB, T0, T1, T2 = 64, 84, 104, 124, 144, 164, 184, 204, 224
    vQ, vYA, vMG, vML, vMR, vFC, vTAU, vHL = 4, 5, 6, 7, 8, 9, 10, 11
    X0 = 244
    A(f'''
    v_and_b32 v{vHL}, 31, v{vL}
    v_lshrrev_b32 v{vTAU}, 5, v0
    s_lshr_b32 s{sA}, s{sJ}, 1
    s_lshl_b32 s{sA}, s{sA}, 3
    s_add_u32 s{sA}, s{sA}, s{sX}
    s_and_b32 s{sB}, s{sJ}, 1
    s_lshl_b32 s{sB}, s{sB}, 3
    s_mul_i32 s{sA}, s{sA}, 20480
    v_add_u32 v2, s{sB}, v{vTAU}
    v_mul_u32_u24 v{vQ}, 1280, v2
    v_lshlrev_b32 v3, 3, v{vHL}
    v_add3_u32 v{vQ}, v{vQ}, v3, s{sA}
    s_add_u32 s{sA}, s{sA}, {W_Y}
    v_lshlrev_b32 v{vYA}, 7, v{vHL}
    v_lshl_add_u32 v{vYA}, v2, 3, v{vYA}
    v_add_u32 v{vYA}, s{sA}, v{vYA}
    ''')
    A.vm_n = 0
    for i in range(5):
        hQ = A.vm(f'buffer_load_dwordx2 {v(QR+2*i,2)}, v{vQ}, {s(R_Q,4)}, 0 offen offset:{256*i}')
    for i in range(5):
        hW = A.vm(f'buffer_load_dwordx2 {v(WRR+2*i,2)}, v3, {s(R_WR,4)}, 0 offen offset:{256*i}')
    A(f'''
    v_min_u32 v2, 59, v{vL}
    s_mul_i32 s{sA}, s{sW}, 3840
    v_lshlrev_b32 v2, 4, v2
    v_add_u32 v2, s{sA}, v2
    v_add_u32 v{vMG}, {W_MOD}, v2
    v_add_u32 v{vML}, {L_MOD}, v2
    v_lshlrev_b32 v{vMR}, 4, v{vHL}
    v_add_u32 v{vMR}, {L_MOD}, v{vMR}
    v_min_u32 v2, 159, v0
    v_mul_u32_u24 v{vFC}, {FSC}, v2
    v_add_u32 v{vFC}, {W_FLAGC}, v{vFC}
    ''')
    lab = spin_begin('mod')
    for i in range(4):
        A(f'buffer_load_dwordx4 {v(MR+4*i,4)}, v{vMG}, {s(R_WS,4)}, 0 offen offset:{960*i} sc1')
    A(f'buffer_load_dword v{FC}, v{vFC}, {s(R_WS,4)}, 0 offen sc1')
    A.wait0(vm=True)
    A(f'v_xor_b32 v2, s{sTAG}, v{MR}')
    for i in range(1, 16):
        A(f'v_bitop3_b32 v2, v2, v{MR+i}, s{sTAG} bitop3:0xf6')
    A(f'v_and_b32 v2, 0xffff, v2')
    A(f'v_bitop3_b32 v2, v2, v{FC}, s{sT} bitop3:0xf6')
    A(f'v_cmp_ne_u32 vcc, 0, v2')
    spin_end(lab)
    stamp(7)
    for i in range(16):
        A(f'v_and_b32 v{MR+i}, s{sHI}, v{MR+i}')
    for i in range(4):
        A(f'ds_write_b128 v{vML}, {v(MR+4*i,4)} offset:{960*i}')
    for i in range(10):
        unpack(QF + 2 * i, QR + i)
    sum20(X0, QF, T0)
    red32([X0], X0 + 2)
    A(f'v_mul_f32 v{X0}, {hexf(1/640)}, v{X0}')
    A.wait0(lg=True)
    A('s_barrier')
    A.lg_n = 0
    hm = {}
    for seg, dst in ((1, T1), (0, T0), (2, T2), (4, C1), (3, SB), (5, GB)):
        for i in range(5):
            hm[seg] = A.lg(f'ds_read_b128 {v(dst+4*i,4)}, v{vMR} offset:{2560*seg+512*i}')
    for i in range(10):
        A(f'v_pk_add_f32 {v(GH+2*i,2)}, {v(QF+2*i,2)}, {v(X0,2)} op_sel_hi:[1,0] neg_lo:[0,1] neg_hi:[0,1]')
    dots20([(X0 + 2, GH, GH, X0 + 4)])
    red32([X0 + 2], X0 + 4)
    A(f'v_mov_b32 v{X0+4}, {hexf(1e-5)}')
    A(f'v_fmac_f32 v{X0+4}, {hexf(1/640)}, v{X0+2}')
    A(f'v_rsq_f32 v{X0+2}, v{X0+4}')
    for i in range(10):
        unpack(CW + 2 * i, WRR + i)
    A.wait0(lg=True)
    for i in range(10):
        A(f'v_pk_fma_f32 {v(T1+2*i,2)}, {v(T1+2*i,2)}, {v(X0+2,2)}, {v(X0+2,2)} op_sel_hi:[1,0,0]')
    for i in range(10):
        A(f'v_pk_fma_f32 {v(GH+2*i,2)}, {v(GH+2*i,2)}, {v(T1+2*i,2)}, {v(T0+2*i,2)}')
    for i in range(10):
        A(f'v_pk_mul_f32 {v(GH+2*i,2)}, {v(GH+2*i,2)}, {v(T2+2*i,2)}')
    vC2 = X0 + 8
    dots20([(vC2, SB, CW, X0 + 4)])
    for i in range(10):
        A(f'v_pk_add_f32 {v(C1+2*i,2)}, {v(C1+2*i,2)}, 1.0 op_sel_hi:[1,0]')
    for i in range(10):
        A(f'v_pk_mul_f32 {v(CW+2*i,2)}, {v(CW+2*i,2)}, {v(C1+2*i,2)}')
    red32([vC2], X0 + 4)
    vSC, vID = 12, 13
    A(f'''
    v_lshlrev_b32 v{vSC}, 2, v{vTAU}
    v_add_u32 v{vSC}, {L_SCR}, v{vSC}
    s_lshl_b32 s{sA}, s2, 3
    v_add_u32 v{vID}, s{sA}, v{vTAU}
    v_mov_b32 v14, {L_SCR}
    s_add_u32 s{sA}, s{sA}, {W_KEYS}
    v_mov_b32 v15, s{sA}
    ''')
    stamp(8)
    lab = spin_begin('y')
    for i in range(5):
        A(f'buffer_load_dwordx2 {v(YR+2*i,2)}, v{vYA}, {s(R_WS,4)}, {SOFF[i]} offen sc1')
    A.wait0(vm=True)
    A(f'v_max3_u32 v2, v{YR}, v{YR+1}, v{YR+2}')
    A(f'v_max3_u32 v3, v{YR+3}, v{YR+4}, v{YR+5}')
    A(f'v_max3_u32 v2, v2, v{YR+6}, v{YR+7}')
    A(f'v_max3_u32 v3, v3, v{YR+8}, v{YR+9}')
    A(f'v_max_u32 v2, v2, v3')
    A(f'v_cmp_eq_u32 vcc, -1, v2')
    spin_end(lab)
    stamp(9)
    X1, XC, H2 = T0, T1, T2
    for i in range(10):
        unpack(X1 + 2 * i, YR + i)
    for i in range(10):
        A(f'v_pk_fma_f32 {v(X1+2*i,2)}, {v(X1+2*i,2)}, {v(GH+2*i,2)}, {v(QF+2*i,2)}')
    sum20(X0, X1, H2)
    red32([X0], X0 + 2)
    A(f'v_mul_f32 v{X0}, {hexf(1/640)}, v{X0}')
    for i in range(10):
        A(f'v_pk_add_f32 {v(XC+2*i,2)}, {v(X1+2*i,2)}, {v(X0,2)} op_sel_hi:[1,0] neg_lo:[0,1] neg_hi:[0,1]')
    dots20([(X0 + 2, XC, XC, X0 + 4), (X0 + 3, XC, CW, X0 + 6)])
    red32([X0 + 2, X0 + 3], X0 + 4)
    A(f'''
    v_mov_b32 v{X0+4}, {hexf(1e-5)}
    v_fmac_f32 v{X0+4}, {hexf(1/640)}, v{X0+2}
    v_rsq_f32 v{X0+2}, v{X0+4}
    s_movk_i32 s{sA}, 0xf800
    v_fma_f32 v{X0+3}, v{X0+3}, v{X0+2}, v{vC2}
    v_ashrrev_i32 v2, 31, v{X0+3}
    v_or_b32 v2, 0x80000000, v2
    v_xor_b32 v2, v2, v{X0+3}
    v_and_or_b32 v{vID}, v2, s{sA}, v{vID}
    ds_write_b32 v{vSC}, v{vID}
    ''')
    for i in range(10):
        A(f'v_pk_mul_f32 {v(C1+2*i,2)}, {v(C1+2*i,2)}, {v(X0+2,2)} op_sel_hi:[1,0]')
    A.wait0(lg=True)
    A('s_barrier')
    A('ds_read_b128 v[16:19], v14')
    A('ds_read_b128 v[20:23], v14 offset:16')
    for i in range(10):
        A(f'v_pk_fma_f32 {v(H2+2*i,2)}, {v(XC+2*i,2)}, {v(C1+2*i,2)}, {v(SB+2*i,2)}')
    A(f'v_mov_b32 v3, s{sT}')
    A.wait0(lg=True)
    A(f'''
    v_max3_u32 v2, v16, v17, v18
    v_max3_u32 v19, v19, v20, v21
    v_max3_u32 v2, v2, v22, v23
    v_max_u32 v2, v2, v19
    s_cmp_lg_u32 s{sW}, 0
    s_cbranch_scc1 L_nokey
    s_mov_b64 exec, 1
    buffer_store_dwordx2 v[2:3], v15, {s(R_WS,4)}, 0 offen sc1
    s_mov_b64 exec, -1
    ''')
    A.label('L_nokey')
    stamp(10)
    vRO = 12
    A(f'''
    v_cmp_eq_u32 s[{sC+1}:{sC+2}], v2, v{vID}
    s_mul_i32 s{sA}, s2, 2560
    v_lshlrev_b32 v{vRO}, 4, v{vHL}
    v_add_u32 v{vRO}, s{sA}, v{vRO}
    v_mov_b32 v3, s{sTAG}
    s_cmp_eq_u64 s[{sC+1}:{sC+2}], 0
    s_cbranch_scc1 L_norow
    s_mov_b64 exec, s[{sC+1}:{sC+2}]
    s_mov_b32 s{sA}, {W_ROWS}
    ''')
    for i in range(5):
        for k in range(2):
            A(f'v_cvt_pk_bf16_f32 v2, v{H2+4*i+2*k}, v{H2+4*i+2*k+1}')
            A(f'v_lshl_or_b32 v{16+4*i+2*k}, v2, 16, v3')
            A(f'v_and_or_b32 v{17+4*i+2*k}, v2, s{sHI}, v3')
        A(f'buffer_store_dwordx4 {v(16+4*i,4)}, v{vRO}, {s(R_WS,4)}, s{sA} offen offset:{512*i} sc1')
    A('s_mov_b64 exec, -1')
    A.label('L_norow')
    for i in range(10):
        A(f'v_pk_fma_f32 {v(X1+2*i,2)}, {v(GB+2*i,2)}, {v(H2+2*i,2)}, {v(X1+2*i,2)}')
    for i in range(5):
        A(f'v_cvt_pk_bf16_f32 v{40+2*i}, v{X1+4*i}, v{X1+4*i+1}')
        A(f'v_cvt_pk_bf16_f32 v{41+2*i}, v{X1+4*i+2}, v{X1+4*i+3}')
        A(f'buffer_store_dwordx2 {v(40+2*i,2)}, v{vQ}, {s(R_OUT,4)}, 0 offen offset:{256*i} sc1')
    A(f'''
    s_cmp_eq_u64 s[{sC+1}:{sC+2}], 0
    s_cbranch_scc1 L_nobase
    s_mov_b64 exec, s[{sC+1}:{sC+2}]
    s_movk_i32 s{sB}, 0xff
    s_mov_b32 s{sA}, {W_BASE}
    ''')
    for i in range(20):
        A(f'v_bfi_b32 v{X1+i}, s{sB}, v3, v{X1+i}')
    A.wait0(vm=True)
    for i in range(5):
        A(f'buffer_store_dwordx4 {v(X1+4*i,4)}, v{vRO}, {s(R_WS,4)}, s{sA} offen offset:{512*i} sc1')
    A('s_mov_b64 exec, -1')
    A.label('L_nobase')
    stamp(11)
    A(f'''
    s_sub_u32 s{sA}, s{sROLE}, 1
    s_cmp_ge_u32 s{sA}, 2
    s_cbranch_scc1 L_fin
    ''')

    vXW, vXR = 6, 7
    A(f'''
    v_lshlrev_b32 v4, 4, v{vL}
    s_mov_b32 s{sB}, {W_KEYS}
    s_mul_i32 s{sA}, s{sW}, {XAW}
    s_add_u32 s{sA}, s{sA}, {L_XA}
    v_lshrrev_b32 v{vXR}, 4, v{vL}
    v_lshlrev_b32 v{vXR}, 4, v{vXR}
    v_add_u32 v{vXR}, s{sA}, v{vXR}
    ''')
    quadpos(vXW, vL, 2)
    A(f'v_and_b32 v8, 255, v{vXW}')
    A(f'v_add_u32 v{vXW}, s{sA}, v{vXW}')
    A(f'v_add_u32 v8, s{sA}, v8')
    lab = spin_begin('key')
    A(f'buffer_load_dwordx4 v[16:19], v4, {s(R_WS,4)}, s{sB} offen sc1')
    A(f'buffer_load_dwordx4 v[20:23], v4, {s(R_WS,4)}, s{sB} offen offset:1024 sc1')
    A.wait0(vm=True)
    A(f'''
    v_xor_b32 v2, s{sT}, v17
    v_bitop3_b32 v2, v2, v19, s{sT} bitop3:0xf6
    v_bitop3_b32 v2, v2, v21, s{sT} bitop3:0xf6
    v_bitop3_b32 v2, v2, v23, s{sT} bitop3:0xf6
    v_max3_u32 v3, v16, v18, v20
    v_cmp_ne_u32 vcc, 0, v2
    v_max_u32 v3, v3, v22
    ''')
    spin_end(lab)
    for sh in (8, 4, 2, 1):
        A.nop(2)
        A(f'v_max_u32_dpp v3, v3, v3 row_ror:{sh} row_mask:0xf bank_mask:0xf')
    A(f'''
    s_nop 0
    v_readlane_b32 s{sKEY}, v3, 0
    v_readlane_b32 s{sA}, v3, 16
    v_readlane_b32 s{sB}, v3, 32
    v_readlane_b32 s{sC}, v3, 48
    s_max_u32 s{sKEY}, s{sKEY}, s{sA}
    s_max_u32 s{sB}, s{sB}, s{sC}
    s_max_u32 s{sKEY}, s{sKEY}, s{sB}
    s_bfe_u32 s{sSLOT}, s{sKEY}, 0x80003
    s_mul_i32 s{sE}, s{sSLOT}, 2560
    ''')
    stamp(12)
    A(f's_cmp_eq_u32 s{sROLE}, 2')
    A('s_cbranch_scc1 L_f2')

    A(f'''
    s_add_u32 s{sE}, s{sE}, {W_ROWS}
    v_and_b32 v5, 511, v4
    ''')
    lab = spin_begin('row')
    A(f'buffer_load_dwordx4 v[16:19], v4, {s(R_WS,4)}, s{sE} offen sc1')
    A(f'buffer_load_dwordx4 v[20:23], v4, {s(R_WS,4)}, s{sE} offen offset:1024 sc1')
    A(f'buffer_load_dwordx4 v[24:27], v5, {s(R_WS,4)}, s{sE} offen offset:2048 sc1')
    A.wait0(vm=True)
    for i in range(3):
        A(f'v_perm_b32 v{28+2*i}, v{17+4*i}, v{16+4*i}, s{sPHI}')
        A(f'v_perm_b32 v{29+2*i}, v{19+4*i}, v{18+4*i}, s{sPHI}')
        A(f'ds_write_b64 v{vXW if i < 2 else 8}, {v(28+2*i,2)} offset:{512*i}')
    A(f'v_xor_b32 v2, s{sTAG}, v16')
    for r in (19, 20, 23, 24, 27):
        A(f'v_bitop3_b32 v2, v2, v{r}, s{sTAG} bitop3:0xf6')
    A('v_and_b32 v2, 0xffff, v2')
    A('v_cmp_ne_u32 vcc, 0, v2')
    spin_end(lab)

    def gemv(n):
        A.wait0(lg=True)
        A.lg_n = 0
        h = []
        for q in range(n):
            h.append(A.lg(f'ds_read_b128 {v(64+4*q,4)}, v{vXR} offset:{64*q}'))
            if q >= 8:
                A.wait(lg=h[q - 8])
                A(f'v_mfma_f32_16x16x32_bf16 v[40:43], {v(64+4*(q-8),4)}, {a_(4*(q-8),4)}, {"0" if q == 8 else "v[40:43]"}')
        for q in range(n - 8, n):
            A.wait(lg=h[q])
            A(f'v_mfma_f32_16x16x32_bf16 v[40:43], {v(64+4*q,4)}, {a_(4*q,4)}, v[40:43]')

    stamp(13)
    gemv(20)
    A(f'''
    s_lshl_b32 s{sA}, s{sF}, 7
    s_lshl_b32 s{sB}, s{sW}, 5
    s_add_u32 s{sA}, s{sA}, s{sB}
    s_add_u32 s{sA}, s{sA}, {W_HID}
    v_lshlrev_b32 v2, 2, v{vL}
    v_mov_b32 v3, s{sTAG}
    s_nop 1
    v_mul_f32 v44, 0xbfb8aa3b, v40
    v_exp_f32 v44, v44
    v_mul_f32_dpp v45, v41, v40 row_ror:8 row_mask:0xf bank_mask:0xf
    v_add_f32 v44, 1.0, v44
    v_rcp_f32 v44, v44
    s_mov_b64 exec, 0xff
    v_mul_f32 v44, v44, v45
    v_cvt_pk_bf16_f32 v44, v44, v44
    v_and_or_b32 v44, v44, s{sHI}, v3
    buffer_store_dword v44, v2, {s(R_WS,4)}, s{sA} offen sc1
    s_mov_b64 exec, -1
    ''')
    stamp(14)
    A('s_branch L_fin')

    A.label('L_f2')
    A(f'''
    s_lshl_b32 s{sA}, s{sF}, 6
    s_add_u32 s{sE}, s{sE}, s{sA}
    s_add_u32 s{sE}, s{sE}, {W_BASE}
    v_and_b32 v9, 15, v{vL}
    v_lshlrev_b32 v10, 2, v9
    s_add_u32 s{sA}, s{sA}, {L_MOD+5*2560}
    v_add_u32 v2, s{sA}, v10
    ds_read_b32 v50, v2
    s_mul_i32 s{sD_}, s{sW}, 1792
    s_add_u32 s{sD_}, s{sD_}, {W_HID}
    s_cmp_eq_u32 s{sW}, 3
    s_cselect_b32 s{sA}, 31, 47
    v_min_u32 v5, s{sA}, v{vL}
    v_lshlrev_b32 v5, 4, v5
    s_or_b32 s{sA}, s{sF}, s{sW}
    s_cmp_lg_u32 s{sA}, 0
    s_cbranch_scc1 L_noepoch
    v_mov_b32 v2, {W_EPOCH}
    v_mov_b32 v3, s{sT}
    s_mov_b64 exec, 1
    buffer_store_dword v3, v2, {s(R_WS,4)}, 0 offen sc1
    s_mov_b64 exec, -1
    ''')
    A.label('L_noepoch')
    A(f'''
    s_ashr_i32 s{sA}, s{sKEY}, 31
    s_not_b32 s{sA}, s{sA}
    s_or_b32 s{sA}, s{sA}, 0x80000000
    s_xor_b32 s{sA}, s{sA}, s{sKEY}
    v_mov_b32 v51, 0xbfb8aa3b
    v_mul_f32 v51, s{sA}, v51
    v_exp_f32 v51, v51
    s_lshr_b32 s{sA}, s{sSLOT}, 4
    v_add_f32 v51, 1.0, v51
    v_rcp_f32 v51, v51
    s_lshl_b32 s{sA}, s{sA}, 3
    s_and_b32 s{sB}, s{sSLOT}, 7
    s_add_u32 s{sA}, s{sA}, s{sB}
    s_lshl_b32 s{sA}, s{sA}, 4
    s_and_b32 s{sB}, s{sSLOT}, 8
    s_add_u32 s{sA}, s{sA}, s{sB}
    s_and_b32 s{sB}, s{sKEY}, 7
    s_add_u32 s{sA}, s{sA}, s{sB}
    s_mul_i32 s{sA}, s{sA}, 1280
    s_lshl_b32 s{sB}, s{sF}, 5
    s_add_u32 s{sSLOT}, s{sA}, s{sB}
    v_lshlrev_b32 v11, 1, v9
    s_lshl_b32 s{sA}, s{sW}, 6
    s_add_u32 s{sA}, s{sA}, {L_SCR+64}
    v_add_u32 v12, s{sA}, v10
    v_add_u32 v13, {L_SCR+64}, v10
    ''')
    A.wait0(lg=True)
    A('v_mul_f32 v51, v51, v50')
    lab = spin_begin('hid')
    A(f'buffer_load_dword v52, v10, {s(R_WS,4)}, s{sE} offen sc1')
    A(f'buffer_load_dwordx4 v[16:19], v4, {s(R_WS,4)}, s{sD_} offen sc1')
    A(f'buffer_load_dwordx4 v[20:23], v5, {s(R_WS,4)}, s{sD_} offen offset:1024 sc1')
    A.wait0(vm=True)
    for i in range(2):
        A(f'v_perm_b32 v{28+2*i}, v{17+4*i}, v{16+4*i}, s{sPHI}')
        A(f'v_perm_b32 v{29+2*i}, v{19+4*i}, v{18+4*i}, s{sPHI}')
        A(f'ds_write_b64 v{vXW}, {v(28+2*i,2)} offset:{512*i}')
    A(f'v_xor_b32 v2, s{sTAG}, v52')
    A('v_and_b32 v2, 0xff, v2')
    for r in range(16, 24):
        A(f'v_bitop3_b32 v2, v2, v{r}, s{sTAG} bitop3:0xf6')
    A('v_and_b32 v2, 0xffff, v2')
    A('v_cmp_ne_u32 vcc, 0, v2')
    spin_end(lab)
    stamp(13)
    gemv(14)
    A.nop(8)
    A('ds_write_b32 v12, v40')
    A.wait0(lg=True)
    A(f'''
    s_barrier
    s_cmp_lg_u32 s{sW}, 0
    s_cbranch_scc1 L_fin
    ds_read2_b32 v[44:45], v13 offset0:0 offset1:16
    ds_read2_b32 v[46:47], v13 offset0:32 offset1:48
    v_and_b32 v52, 0xffffff00, v52
    s_waitcnt lgkmcnt(0)
    v_add_f32 v44, v44, v45
    v_add_f32 v46, v46, v47
    v_add_f32 v44, v44, v46
    v_fma_f32 v44, v44, v51, v52
    v_cvt_pk_bf16_f32 v44, v44, v44
    s_mov_b64 exec, 0xffff
    buffer_store_short v44, v11, {s(R_OUT,4)}, s{sSLOT} offen sc1
    s_mov_b64 exec, -1
    ''')
    stamp(14)
    A.label('L_fin')
    if opt.get('leak') is not None:
        A.wait0(vm=True)
        stamp(15)
        A.nop(2)
        A(f'v_readlane_b32 s{sA}, v{vSTAMP}, 0')
        A(f'v_readlane_b32 s{sB}, v{vSTAMP}, {opt["leak"]}')
        A(f's_cmp_eq_u32 s{sB}, 0')
        A(f's_cselect_b32 s{sB}, s{sA}, s{sB}')
        A(f's_sub_u32 s{sB}, s{sB}, s{sA}')
        A(f's_min_u32 s{sB}, s{sB}, 10000')
        A(f's_mul_i32 s{sB}, s{sB}, 10')
        A(f's_add_u32 s{sB}, s{sB}, 6000')
        A.label('L_leak')
        A(f's_memrealtime {s(sST,2)}')
        A.wait0(lg=True)
        A(f's_sub_u32 s{sC}, s{sST}, s{sA}')
        A(f's_cmp_lt_u32 s{sC}, s{sB}')
        A('s_cbranch_scc1 L_leak')
    elif stamps:
        A.wait0(vm=True)
        stamp(15)
        A(f'''
        s_lshl_b32 s{sA}, s2, 2
        s_add_u32 s{sA}, s{sA}, s{sW}
        s_lshl_b32 s{sA}, s{sA}, 8
        s_add_u32 s{sA}, s{sA}, {W_STAMP}
        v_lshlrev_b32 v2, 2, v{vL}
        buffer_store_dword v{vSTAMP}, v2, {s(R_WS,4)}, s{sA} offen
        ''')
    A.label('L_end')
    A('s_endpgm')
    return A


def hexf(x):
    import struct
    return hex(struct.unpack('<I', struct.pack('<f', x))[0])


def build(opt):
    A = gen(opt)
    errs = check(A.lines)
    for e in errs:
        print('CHECK:', e, file=sys.stderr)
    ref = open(f'cdna_kernels/{NAME}.s.ref').read().split('\n')
    head = [ln for ln in ref if ln.startswith(';') and '@launch' not in ln and 'Override' not in ln and 'grid=ceil' not in ln]
    k = NAME + '_kernel'
    txt = '\n'.join(head) + f'''
; @launch grid=(256,1,1) block=(256,1,1) lds={L_TOTAL}
.amdgcn_target "amdgcn-amd-amdhsa--gfx950"
.text
.globl {k}
.p2align 8
.type {k},@function
{k}:
''' + A.text() + f'''.section .rodata,"a"
.p2align 6
.amdhsa_kernel {k}
  .amdhsa_next_free_vgpr 512
  .amdhsa_next_free_sgpr 102
  .amdhsa_accum_offset 256
  .amdhsa_group_segment_fixed_size 0
  .amdhsa_kernarg_size 128
  .amdhsa_user_sgpr_count 2
  .amdhsa_user_sgpr_kernarg_segment_ptr 1
  .amdhsa_system_sgpr_workgroup_id_x 1
  .amdhsa_float_denorm_mode_32 3
.end_amdhsa_kernel
'''
    return txt, errs


if __name__ == '__main__':
    out = sys.argv[1]
    opt = {}
    for a in sys.argv[2:]:
        k_, val = a.split('=')
        opt[k_] = int(val)
    txt, errs = build(opt)
    open(out, 'w').write(txt)
    sys.exit(1 if errs else 0)
```

```python
import re

class Asm:
    def __init__(self):
        self.lines = []
        self.vm_n = 0
        self.lg_n = 0
        self.uid = 0
    def __call__(self, s):
        for ln in s.strip().split('\n'):
            ln = ln.strip()
            if ln:
                self.lines.append(ln)
    def label(self, name):
        self.lines.append(name + ':')
    def newlabel(self, base):
        self.uid += 1
        return f'L_{base}_{self.uid}'
    def vm(self, s):
        self(s); self.vm_n += 1
        return self.vm_n
    def lg(self, s):
        self(s); self.lg_n += 1
        return self.lg_n
    def wait(self, vm=None, lg=None):
        parts = []
        if vm is not None:
            n = self.vm_n - vm
            assert 0 <= n, n
            parts.append(f'vmcnt({min(n,63)})')
        if lg is not None:
            n = self.lg_n - lg
            assert 0 <= n, n
            parts.append(f'lgkmcnt({min(n,15)})')
        self('s_waitcnt ' + ' '.join(parts))
    def wait0(self, vm=False, lg=False):
        parts = []
        if vm: parts.append('vmcnt(0)')
        if lg: parts.append('lgkmcnt(0)')
        self('s_waitcnt ' + ' '.join(parts))
    def nop(self, n):
        while n > 0:
            k = min(n, 16)
            self(f's_nop {k-1}')
            n -= k
    def text(self):
        out = []
        for ln in self.lines:
            out.append(ln if ln.endswith(':') else '    ' + ln)
        return '\n'.join(out) + '\n'

def v(a, n=1):
    return f'v{a}' if n == 1 else f'v[{a}:{a+n-1}]'
def a_(a, n=1):
    return f'a{a}' if n == 1 else f'a[{a}:{a+n-1}]'
def s(a, n=1):
    return f's{a}' if n == 1 else f's[{a}:{a+n-1}]'

_R = re.compile(r'^-?\|?(?:abs\()?([vas])(\d+)\)?\|?$')
_RR = re.compile(r'^-?([vas])\[(\d+):(\d+)\]$')
def regs(tok):
    tok = tok.strip()
    m = _R.match(tok)
    if m: return {(m.group(1), int(m.group(2)))}
    m = _RR.match(tok)
    if m: return {(m.group(1), i) for i in range(int(m.group(2)), int(m.group(3)) + 1)}
    if tok == 'vcc': return {('s', 'vcc')}
    if tok in ('vcc_lo', 'vcc_hi'): return {('s', 'vcc')}
    if tok in ('exec', 'exec_lo', 'exec_hi'): return {('s', 'exec')}
    if tok == 'm0': return {('s', 'm0')}
    return set()

TRANS = ('v_exp_f32', 'v_log_f32', 'v_rcp_f32', 'v_rsq_f32', 'v_sqrt_f32', 'v_sin_f32', 'v_cos_f32')

class Ins:
    def __init__(self, text):
        self.text = text
        t = text.split(';')[0].strip()
        sp = t.split(None, 1)
        self.op = op = sp[0]
        rest = sp[1] if len(sp) > 1 else ''
        ops = [x.strip() for x in re.split(r',(?![^\[]*\])', rest)] if rest else []
        mods = ''
        if ops:
            last = ops[-1].split(None, 1)
            ops[-1] = last[0]
            mods = last[1] if len(last) > 1 else ''
        self.ops, self.mods = ops, mods
        self.w, self.r = set(), set()
        self.kind = 'other'
        self.dpp = 'row_' in mods or 'wave_' in mods or 'quad_perm' in mods
        R = [regs(o) for o in ops]
        allr = lambda xs: set().union(*xs) if xs else set()
        if op.startswith('v_mfma'):
            self.kind = 'mfma'; self.w = R[0]; self.r = allr(R[1:]); self.ab = R[1] | R[2]; self.c = R[3]
            self.passes = 4 if '16x16x32' in op else 8
        elif op.startswith('v_'):
            self.kind = 'valu'
            self.w = set(R[0]); self.r = allr(R[1:])
            if 'permlane' in op and 'swap' in op:
                self.w = R[0] | R[1]; self.r = R[0] | R[1]
            if op.startswith(('v_fmac', 'v_dot2c', 'v_pk_fmac', 'v_writelane')) or self.dpp:
                self.r |= R[0]
            if op.startswith(('v_add_co', 'v_sub_co', 'v_addc_co', 'v_subb_co')):
                self.w |= R[1]; self.r = allr(R[2:])
            if op.startswith('v_cmpx'): self.w |= {('s', 'exec')}
        elif op.startswith('ds_'):
            self.kind = 'ds'
            if op.startswith(('ds_read', 'ds_bpermute', 'ds_permute', 'ds_swizzle')) or '_rtn' in op:
                self.w = R[0]; self.r = allr(R[1:])
            else:
                self.r = allr(R)
        elif op.startswith(('buffer_', 'global_')):
            self.kind = 'vm'
            self.lds = ' lds' in (' ' + mods) or 'load_lds' in op
            if op in ('buffer_wbl2', 'buffer_inv'):
                pass
            elif 'load' in op and not self.lds:
                self.w = R[0]; self.r = allr(R[1:])
            elif 'atomic' in op and 'sc0' in mods:
                self.w = R[0]; self.r = allr(R)
            else:
                self.r = allr(R)
            if self.lds: self.r |= {('s', 'm0')}
            self.wide = set()
            if 'store' in op and ('x3' in op or 'x4' in op):
                self.wide = R[0] if op.startswith('buffer') else R[1]
        elif op.startswith(('s_load', 's_memrealtime', 's_memtime', 's_buffer_load')):
            self.kind = 'smem'; self.w = R[0]; self.r = allr(R[1:])
        elif op == 's_waitcnt':
            self.kind = 'wait'
            m = re.search(r'vmcnt\((\d+)\)', t); self.vmc = int(m.group(1)) if m else None
            m = re.search(r'lgkmcnt\((\d+)\)', t); self.lgc = int(m.group(1)) if m else None
        elif op == 's_nop':
            self.kind = 'nop'; self.n = int(ops[0], 0) + 1
        elif op.startswith(('s_branch', 's_cbranch')):
            self.kind = 'br'; self.target = ops[0]
        elif op == 's_endpgm':
            self.kind = 'end'
        elif op.startswith('s_'):
            self.kind = 'salu'
            if op.startswith(('s_cmp', 's_bitcmp', 's_barrier', 's_sleep', 's_setprio', 's_setreg')):
                self.r = allr(R)
            else:
                self.w = set(R[0]) if R else set(); self.r = allr(R[1:])
                if 'saveexec' in op: self.w |= {('s', 'exec')}
                if op.startswith(('s_addk', 's_mulk', 's_bitset')): self.r |= R[0]

def need_states(p, c):
    n = 0
    vw = {x for x in p.w if x[0] in 'va'}
    sw = {x for x in p.w if x[0] == 's'}
    if p.kind == 'valu':
        if c.kind == 'mfma' and vw & c.r: n = max(n, 2)
        if c.kind == 'valu' and c.dpp and vw & c.r: n = max(n, 2)
        if c.kind == 'valu' and 'permlane' in c.op and vw & c.r: n = max(n, 2)
        if c.kind == 'valu' and c.op.startswith(('v_readlane', 'v_readfirstlane')) and vw & c.r: n = max(n, 1)
        if p.op.startswith(TRANS) and c.kind in ('valu', 'mfma') and vw & c.r: n = max(n, 1)
        if sw:
            if c.kind == 'valu' and sw & c.r:
                n = max(n, 4 if c.op.startswith(('v_readlane', 'v_writelane')) else 2)
            if c.kind == 'vm' and sw & c.r: n = max(n, 5)
    if p.kind == 'mfma':
        k = {4: 8, 8: 12}[p.passes]
        if c.kind == 'mfma':
            if p.w & c.ab: n = max(n, k)
            if p.w & c.c and p.w != c.c: n = max(n, k - 2)
            if p.w & c.w and p.w != c.c: n = max(n, k - 2)
        elif c.kind in ('valu', 'ds', 'vm') and p.w & (c.r | c.w): n = max(n, k)
        if c.kind == 'valu' and p.c & c.w: n = max(n, {4: 3, 8: 7}[p.passes])
    if p.kind == 'vm' and getattr(p, 'wide', None):
        if c.kind in ('valu', 'mfma') and p.wide & c.w: n = max(n, 2)
        elif p.wide & c.w: n = max(n, 1)
    if p.kind == 'salu' and ('s', 'm0') in p.w and c.kind == 'vm' and c.lds: n = max(n, 1)
    return n

def check(lines, entry=0, maxstates=400000):
    prog, labels = [], {}
    for ln in lines:
        if ln.endswith(':'):
            labels[ln[:-1]] = len(prog)
        elif ln.startswith(('.', ';')):
            continue
        else:
            prog.append(Ins(ln))
    errs = set()
    labpcs = set(labels.values())
    seen = set()
    stack = [(entry, (), (), ())]
    nst = 0
    while stack:
        pc, vmq, lgq, win = stack.pop()
        while True:
            key = (pc, vmq, lgq, win)
            ins = prog[pc]
            if ins.kind == 'br' or pc in labpcs:
                if key in seen: break
                seen.add(key); nst += 1
                if nst > maxstates: raise RuntimeError('too many states')
            touched = ins.r | ins.w
            for q in vmq:
                if q >= 0 and prog[q].w & touched:
                    errs.add(f'pending vm load [{prog[q].text}] touched by [{ins.text}] @{pc}')
            for q in lgq:
                if prog[q].w & touched:
                    errs.add(f'pending lgkm load [{prog[q].text}] touched by [{ins.text}] @{pc}')
            for (q, d) in win:
                k = need_states(prog[q], ins)
                if d < k:
                    errs.add(f'hazard need {k} have {d}: [{prog[q].text}] -> [{ins.text}] @{pc}')
            step = ins.n if ins.kind == 'nop' else 1
            win = tuple((q, d + step) for (q, d) in win if d + step < 12)
            if ins.kind in ('valu', 'mfma', 'vm', 'salu') and (ins.kind != 'salu' or ('s', 'm0') in ins.w):
                win = win + ((pc, 0),)
            if ins.kind == 'vm':
                vmq = (vmq + (pc if ins.w else -1,))[-64:]
            elif ins.kind in ('ds', 'smem'):
                lgq = lgq + (pc,)
            elif ins.kind == 'wait':
                if ins.vmc is not None:
                    vmq = vmq[len(vmq) - ins.vmc:] if ins.vmc and len(vmq) > ins.vmc else (vmq if ins.vmc else ())
                if ins.lgc is not None:
                    if ins.lgc == 0: lgq = ()
                    else:
                        if any(prog[q].kind == 'smem' for q in lgq):
                            errs.add(f'counted lgkmcnt with SMEM outstanding @{pc} [{ins.text}]')
                        if len(lgq) > ins.lgc: lgq = lgq[len(lgq) - ins.lgc:]
            while vmq and vmq[0] < 0: vmq = vmq[1:]
            while lgq and not prog[lgq[0]].w and prog[lgq[0]].kind != 'smem': lgq = lgq[1:]
            if ins.kind == 'end': break
            if ins.kind == 'br':
                tgt = labels[ins.target]
                if ins.op == 's_branch':
                    pc = tgt; continue
                stack.append((tgt, vmq, lgq, win))
            pc += 1
    return sorted(errs)
```

```python
import sys
from asmlib import Asm, v, a_, s, check

NAME = 'adaLN_cond__ssm_conv_h3__moe_arch_mod__prompt'

W_EPOCH = 0
W_FLAG1 = 0x1000
W_FLAGC = 0x1A000
W_KEYS  = 0x20000
W_MOD   = 0x22000
W_HID   = 0x26000
W_ROWS  = 0x30000
W_BASE  = 0xD0000
W_KVT   = 0x200000
W_Y     = 0x500000
W_STAMP = 0x800000
W_SIZE  = 0x900000

L_KC, KCW, KC1 = 0, 8320, 4160
L_XB, XBW = 33280, 4608
L_YS = 51712
L_WB1 = 0
L_WB2 = 81920
L_XA, XAW = 139264, 1280
L_MOD = 144384
L_SCR = 159744
L_TOTAL = 160256

P_Q, P_K, P_V, P_SH, P_SK, P_SD, P_BX, P_WR = 4, 6, 8, 10, 12, 14, 16, 18
P_WG, P_WU, P_WD, P_C, P_WM, P_OUT, P_DBG, P_WS = 20, 22, 24, 26, 28, 30, 32, 34
R_K, R_V, R_WS, R_Q, R_OUT, R_G1, R_G2, R_SH, R_WR = 36, 40, 44, 48, 52, 56, 60, 64, 68
sX, sJ, sW, sT = 72, 73, 74, 75
sC4, sC8, sC12, sC16, sC5120 = 76, 77, 78, 79, 80
sA, sB, sC, sD_, sE = 81, 82, 83, 84, 85
sSD, sKEY, sSLOT = 86, 87, 88
sSPIN, sHI, sPLO, sPHI, sTAG, sF, sROLE, sMI = 90, 91, 92, 93, 94, 95, 96, 97
sST = 98
SOFF = ['0', s(sC4), s(sC8), s(sC12), s(sC16)]
vL = 1
vSTAMP = 255
SPIN = 0x20000


def gen(opt):
    FS1 = opt.get('fs1', 16)
    FSC = opt.get('fsc', 16)
    PD = opt.get('pd', 8)
    NB = PD + 2
    stamps = opt.get('stamps', False)
    A = Asm()
    NT = ' nt' if opt.get('nt') else ''

    def stamp(k):
        if not stamps:
            return
        if opt.get('leak') is not None and k != opt['leak']:
            return
        A(f's_memrealtime {s(sST,2)}')
        A.wait0(lg=True)
        A(f'v_writelane_b32 v{vSTAMP}, s{sST}, {k}')

    def srd(r, p, size):
        A(f's_mov_b64 {s(r,2)}, {s(p,2)}')
        A(f's_mov_b32 s{r+2}, {size}')
        A(f's_mov_b32 s{r+3}, 0x20000')

    def spin_begin(name):
        lab = A.newlabel(name)
        A(f's_mov_b32 s{sSPIN}, {SPIN}')
        A.label(lab)
        return lab

    def spin_end(lab):
        ok = lab + '_ok'
        A(f's_cbranch_vccz {ok}')
        A(f's_sub_u32 s{sSPIN}, s{sSPIN}, 1')
        A(f's_cbranch_scc0 {lab}')
        A.label(ok)

    def unpack(dst, src):
        A(f'v_lshlrev_b32 v{dst}, 16, v{src}')
        A(f'v_and_b32 v{dst+1}, s{sHI}, v{src}')

    def red32(rs, tmp, op='add_f32'):
        pad = max(0, 2 - (len(rs) - 1))
        for sh in (8, 4, 2, 1):
            A.nop(pad if sh != 8 else 2)
            for r in rs:
                A(f'v_{op}_dpp v{r}, v{r}, v{r} row_ror:{sh} row_mask:0xf bank_mask:0xf')
        for i, r in enumerate(rs):
            A(f'v_mov_b32 v{tmp+i}, v{r}')
        A.nop(2)
        for i, r in enumerate(rs):
            A(f'v_permlane16_swap_b32 v{tmp+i}, v{r}')
        for i, r in enumerate(rs):
            A(f'v_{op} v{r}, v{tmp+i}, v{r}')

    def sum20(dst, src, tmp):
        for i in range(5):
            A(f'v_pk_add_f32 {v(tmp+2*i,2)}, {v(src+4*i,2)}, {v(src+4*i+2,2)}')
        A(f'v_pk_add_f32 {v(tmp,2)}, {v(tmp,2)}, {v(tmp+2,2)}')
        A(f'v_pk_add_f32 {v(tmp+4,2)}, {v(tmp+4,2)}, {v(tmp+6,2)}')
        A(f'v_pk_add_f32 {v(tmp,2)}, {v(tmp,2)}, {v(tmp+8,2)}')
        A(f'v_pk_add_f32 {v(tmp,2)}, {v(tmp,2)}, {v(tmp+4,2)}')
        A(f'v_add_f32 v{dst}, v{tmp}, v{tmp+1}')

    def dots20(items):
        for i in range(10):
            for (d, x, y, t) in items:
                if i == 0:
                    A(f'v_pk_mul_f32 {v(t,2)}, {v(x,2)}, {v(y,2)}')
                else:
                    A(f'v_pk_fma_f32 {v(t,2)}, {v(x+2*i,2)}, {v(y+2*i,2)}, {v(t,2)}')
        for (d, x, y, t) in items:
            A(f'v_add_f32 v{d}, v{t}, v{t+1}')

    def quadpos(dst, src, tmp):
        A(f'v_and_b32 v{tmp}, 1, v{src}')
        A(f'v_bfe_u32 v{dst}, v{src}, 1, 1')
        A(f'v_lshl_or_b32 v{dst}, v{tmp}, 1, v{dst}')
        A(f'v_and_b32 v{tmp}, -4, v{src}')
        A(f'v_or_b32 v{dst}, v{tmp}, v{dst}')
        A(f'v_lshlrev_b32 v{dst}, 3, v{dst}')

    def dma_loop(voff, r, n, gstep, lds0, g0=None):
        lab = A.newlabel('dma')
        A(f's_mov_b32 m0, {lds0}')
        A(f's_mov_b32 s{sA}, {g0 if g0 is not None else 0}')
        A(f's_mov_b32 s{sB}, {n}')
        A.label(lab)
        A(f'buffer_load_dwordx4 v{voff}, {s(r,4)}, s{sA} offen{NT} lds')
        A(f's_add_u32 s{sA}, s{sA}, {gstep}')
        A(f's_add_u32 m0, m0, 1024')
        A(f's_sub_u32 s{sB}, s{sB}, 1')
        A(f's_cmp_lg_u32 s{sB}, 0')
        A(f's_cbranch_scc1 {lab}')

    A('s_cmp_ge_u32 s2, 256')
    A('s_cbranch_scc1 L_end')
    A('s_load_dwordx16 s[4:19], s[0:1], 0')
    A('s_load_dwordx16 s[20:35], s[0:1], 64')
    if opt.get('pf'):
        A('s_getpc_b64 s[36:37]')
        A.label('L_pc')
        A('v_lshlrev_b32 v3, 7, v0')
        A('v_min_u32 v3, L_end-L_pc, v3')
        A('global_load_dword v254, v3, s[36:37]')
    if stamps:
        A(f's_memrealtime {s(sST,2)}')
        A(f'v_mov_b32 v{vSTAMP}, 0')
    A(f'v_lshrrev_b32 v2, 6, v0')
    A(f'v_and_b32 v{vL}, 63, v0')
    A(f's_and_b32 s{sX}, s2, 7')
    A(f'v_readfirstlane_b32 s{sW}, v2')
    A(f's_lshr_b32 s{sJ}, s2, 3')
    for r, c in ((sC4, 4096), (sC8, 8192), (sC12, 12288), (sC16, 16384), (sC5120, 5120),
                 (sHI, 0xffff0000), (sPLO, 0x05040100), (sPHI, 0x07060302)):
        A(f's_mov_b32 s{r}, {hex(c)}')
    A(f'''
    s_mul_i32 s{sA}, s{sX}, 7
    s_add_u32 s{sA}, s{sA}, s{sJ}
    s_cmp_lt_u32 s{sJ}, 23
    s_cselect_b32 s{sB}, 20, 25
    s_sub_u32 s{sF}, s{sA}, s{sB}
    s_cmp_lt_u32 s{sF}, 54
    s_cselect_b32 s{sROLE}, 1, 3
    s_sub_u32 s{sA}, s2, 120
    s_cmp_lt_u32 s{sJ}, 23
    s_cselect_b32 s{sMI}, s{sA}, 99
    s_mul_i32 s{sA}, s{sX}, 5
    s_add_u32 s{sA}, s{sA}, s{sJ}
    s_sub_u32 s{sA}, s{sA}, 23
    s_sub_u32 s{sB}, s2, 184
    s_cmp_lt_u32 s{sB}, 40
    s_cselect_b32 s{sF}, s{sA}, s{sF}
    s_cselect_b32 s{sMI}, s{sB}, s{sMI}
    s_cselect_b32 s{sROLE}, 2, s{sROLE}
    s_cmp_lt_u32 s{sJ}, 20
    s_cselect_b32 s{sROLE}, 0, s{sROLE}
    ''')
    vM, vH, vS, vT = 4, 5, 6, 7
    A(f'''
    v_and_b32 v2, 7, v{vL}
    v_lshrrev_b32 v3, 3, v{vL}
    s_mul_i32 s{sA}, s{sJ}, 81920
    s_mul_i32 s{sB}, s{sX}, 160
    s_lshl_b32 s{sC}, s{sW}, 6
    s_add_u32 s{sA}, s{sA}, s{sB}
    s_add_u32 s{sA}, s{sA}, s{sC}
    v_mul_u32_u24 v{vM}, 10240, v2
    v_lshl_add_u32 v{vM}, v3, 3, v{vM}
    v_add_u32 v{vM}, s{sA}, v{vM}
    v_subrev_u32 v{vH}, 3840, v{vM}
    s_add_u32 s{sB}, s{sB}, s{sC}
    s_lshl_b32 s{sB}, s{sB}, 2
    v_lshlrev_b32 v{vS}, 5, v3
    v_add_u32 v{vS}, s{sB}, v{vS}
    s_lshl_b32 s{sB}, s{sB}, 9
    s_lshl_b32 s{sC}, s{sJ}, 7
    s_add_u32 s{sB}, s{sB}, s{sC}
    s_add_u32 s{sB}, s{sB}, {W_KVT}
    v_lshlrev_b32 v{vT}, 14, v3
    v_lshl_add_u32 v{vT}, v2, 4, v{vT}
    v_add_u32 v{vT}, s{sB}, v{vT}
    ''')
    A.wait0(lg=True)
    if stamps:
        A(f'v_writelane_b32 v{vSTAMP}, s{sST}, 0')
    if opt.get('wsoff'):
        A(f's_add_u32 s{P_WS}, s{P_WS}, {opt["wsoff"]<<20}')
        A(f's_addc_u32 s{P_WS+1}, s{P_WS+1}, 0')
    srd(R_K, P_K, 2621440)
    srd(R_V, P_V, 2621440)
    srd(R_SH, P_SH, 5120)
    srd(R_WS, P_WS, W_SIZE)
    srd(R_Q, P_Q, 2621440)
    srd(R_OUT, P_OUT, 2621440)
    srd(R_WR, P_WR, 1280)
    A(f's_load_dword s{sT}, {s(P_WS,2)}, {W_EPOCH}')
    A(f'''
    s_mul_i32 s{sA}, s{sX}, 80
    s_lshl_b32 s{sB}, s{sJ}, 2
    s_add_u32 s{sA}, s{sA}, s{sB}
    s_add_u32 s{sA}, s{sA}, s{sW}
    s_min_u32 s{sA}, s{sA}, 639
    s_lshr_b32 s{sA}, s{sA}, 1
    s_lshl_b32 s{sA}, s{sA}, 2
    s_load_dword s{sSD}, {s(P_SD,2)}, s{sA}
    s_cmp_eq_u32 s{sW}, 3
    s_cbranch_scc1 L_loader
    ''')

    KR, VR, SR, WF, KF, VF, KS, KO = 16, 38, 54, 64, 80, 124, 156, 188
    A(f's_cmp_eq_u32 s{sW}, 2')
    A(f's_cselect_b32 exec_hi, 0, -1')
    A.vm_n = 0
    A.vm(f'buffer_load_dwordx4 {v(SR,4)}, v{vS}, {s(R_SH,4)}, 0 offen')
    hS = A.vm(f'buffer_load_dwordx4 {v(SR+4,4)}, v{vS}, {s(R_SH,4)}, 0 offen offset:16')
    hK = []
    for i in range(3):
        hK.append(A.vm(f'buffer_load_dwordx2 {v(KR+2*i,2)}, v{vH}, {s(R_K,4)}, 0 offen offset:{1280*i}{NT}'))
    for i in range(8):
        so = '0' if i < 4 else s(sC5120)
        hK.append(A.vm(f'buffer_load_dwordx2 {v(KR+6+2*i,2)}, v{vM}, {s(R_K,4)}, {so} offen offset:{1280*(i&3)}{NT}'))
    hV = []
    for i in range(8):
        so = '0' if i < 4 else s(sC5120)
        hV.append(A.vm(f'buffer_load_dwordx2 {v(VR+2*i,2)}, v{vM}, {s(R_V,4)}, {so} offen offset:{1280*(i&3)}{NT}'))
    A.wait(vm=hS)
    for c in range(4):
        A(f'v_lshlrev_b32 v{WF+c}, 16, v{SR+2*c}')
        A(f'v_and_b32 v{WF+4+c}, s{sHI}, v{SR+2*c}')
        A(f'v_lshlrev_b32 v{WF+8+c}, 16, v{SR+2*c+1}')
        A(f'v_and_b32 v{WF+12+c}, s{sHI}, v{SR+2*c+1}')
    for i in range(11):
        if i in (0, 4, 8):
            A.wait(vm=hK[min(i + 3, 10)])
        unpack(KF + 4 * i, KR + 2 * i)
        unpack(KF + 4 * i + 2, KR + 2 * i + 1)
        t = i - 3
        if t >= 0:
            for jt in (3, 2, 1, 0):
                for p in range(2):
                    d = v(KS + 4 * t + 2 * p, 2)
                    x = v(KF + 4 * (t + 3 - jt) + 2 * p, 2)
                    w = v(WF + 4 * jt + 2 * p, 2)
                    if jt == 3:
                        A(f'v_pk_mul_f32 {d}, {x}, {w}')
                    else:
                        A(f'v_pk_fma_f32 {d}, {x}, {w}, {d}')
    stamp(1)
    for t in range(8):
        if t in (0, 4):
            A.wait(vm=hV[t + 3])
        unpack(VF + 4 * t, VR + 2 * t)
        unpack(VF + 4 * t + 2, VR + 2 * t + 1)
        for p in range(2):
            A(f'v_pk_mul_f32 {v(KS+4*t+2*p,2)}, {v(KS+4*t+2*p,2)}, {v(VF+4*t+2*p,2)}')
    for c in range(4):
        for m in range(4):
            A(f'v_cvt_pk_bf16_f32 v{KO+4*c+m}, v{KS+4*(7-2*m)+c}, v{KS+4*(6-2*m)+c}')
        A.vm(f'buffer_store_dwordx4 {v(KO+4*c,4)}, v{vT}, {s(R_WS,4)}, {SOFF[c]} offen sc1')
    A('s_mov_b64 exec, -1')
    A.wait0(lg=True)
    A(f's_add_u32 s{sT}, s{sT}, 1')
    A(f's_and_b32 s{sTAG}, s{sT}, 0xffff')
    stamp(2)
    vFA, vFV = 8, 9
    A(f'''
    s_mul_i32 s{sA}, s{sX}, 3
    s_add_u32 s{sA}, s{sA}, s{sW}
    s_lshl_b32 s{sA}, s{sA}, 5
    s_add_u32 s{sA}, s{sA}, s{sJ}
    s_mul_i32 s{sA}, s{sA}, {FS1}
    s_add_u32 s{sA}, s{sA}, {W_FLAG1}
    v_mov_b32 v{vFA}, s{sA}
    v_mov_b32 v{vFV}, s{sT}
    s_cmp_eq_u32 s{sROLE}, 0
    s_cbranch_scc1 L_conv
    ''')

    def publish_flag():
        A.wait0(vm=True)
        A('s_mov_b64 exec, 1')
        A(f'buffer_store_dword v{vFV}, v{vFA}, {s(R_WS,4)}, 0 offen sc1')
        A('s_mov_b64 exec, -1')

    publish_flag()
    stamp(3)
    A('s_branch L_n1')

    A.label('L_loader')
    A(f's_cmp_lg_u32 s{sROLE}, 0')
    A('s_cbranch_scc1 L_loader_n')
    srd(R_G1, P_SK, 2621440)
    vK, vP0, vZ, vY, vD = 4, 5, 8, 6, 7
    A(f'''
    s_mul_i32 s{sA}, s{sX}, 20
    s_add_u32 s{sA}, s{sA}, s{sJ}
    s_lshl_b32 s{sB}, s{sA}, 14
    v_lshlrev_b32 v{vD}, 4, v{vL}
    v_add_u32 v{vK}, s{sB}, v{vD}
    v_add_u32 v{vP0}, -4, v{vK}
    v_bfrev_b32 v2, 1
    v_cmp_eq_u32 vcc, 0, v{vL}
    s_nop 1
    v_cndmask_b32 v{vP0}, v{vP0}, v2, vcc
    ''')
    A.vm_n = 0
    hk = []
    for cw in range(4):
        for i in range(4):
            idx = cw * 4 + i
            A.vm(f'buffer_load_dwordx4 {v(16+4*idx,4)}, v{vK}, {s(R_G1,4)}, {SOFF[cw]} offen offset:{1024*i}{NT}')
            if i == 0:
                hk.append(A.vm(f'buffer_load_dword v{80+idx}, v{vP0}, {s(R_G1,4)}, {SOFF[cw]} offen{NT}'))
            else:
                hk.append(A.vm(f'buffer_load_dword v{80+idx}, v{vK}, {s(R_G1,4)}, {SOFF[cw]} offen offset:{1024*i-4}{NT}'))
    A(f'''
    s_lshl_b32 s{sB}, s{sA}, 7
    s_add_u32 s{sB}, s{sB}, {W_Y}
    v_lshrrev_b32 v2, 3, v{vL}
    v_and_b32 v3, 7, v{vL}
    v_mul_u32_u24 v{vY}, 20480, v2
    v_lshl_add_u32 v{vY}, v3, 4, v{vY}
    v_add_u32 v{vY}, s{sB}, v{vY}
    v_mov_b32 v12, -1
    v_mov_b32 v13, -1
    v_mov_b32 v14, -1
    v_mov_b32 v15, -1
    s_mov_b32 s{sC}, 0
    ''')
    for i in range(16):
        A.vm(f'buffer_store_dwordx4 v[12:15], v{vY}, {s(R_WS,4)}, s{sC} offen sc1')
        A(f's_add_u32 s{sC}, s{sC}, 163840')
    A.wait0(lg=True)
    A(f's_add_u32 s{sT}, s{sT}, 1')
    A(f's_and_b32 s{sTAG}, s{sT}, 0xffff')
    for i in range(4):
        A(f'v_mov_b32 v{vZ+i}, 0')
    A(f'''
    v_lshrrev_b32 v2, 5, v{vL}
    v_and_b32 v3, 31, v{vL}
    v_mul_u32_u24 v2, {XBW}, v2
    v_lshl_add_u32 v2, v3, 4, v2
    ds_write_b128 v2, {v(vZ,4)} offset:{L_XB}
    ds_write_b128 v2, {v(vZ,4)} offset:{L_XB+2*XBW}
    v_bfe_u32 v2, v{vL}, 1, 3
    v_and_b32 v3, 1, v{vL}
    v_mul_u32_u24 v2, {KC1}, v2
    v_lshl_add_u32 v2, v3, 4, v2
    ds_write_b128 v2, {v(vZ,4)} offset:{L_KC}
    ''')
    for cw in range(4):
        for i in range(4):
            idx = cw * 4 + i
            d, t = 16 + 4 * idx, 96 + 4 * (idx & 3)
            A.wait(vm=hk[idx])
            A(f'ds_write_b128 v{vD}, {v(d,4)} offset:{L_KC+cw*KCW+32+1024*i}')
            A(f'v_alignbyte_b32 v{t}, v{d}, v{80+idx}, 2')
            for m in range(1, 4):
                A(f'v_alignbyte_b32 v{t+m}, v{d+m}, v{d+m-1}, 2')
            A(f'ds_write_b128 v{vD}, {v(t,4)} offset:{L_KC+cw*KCW+KC1+32+1024*i}')
    stamp(2)
    A(f'''
    s_mul_i32 s{sA}, s{sA}, {FSC}
    s_add_u32 s{sA}, s{sA}, {W_FLAGC}
    v_mov_b32 v{vFA}, s{sA}
    v_mov_b32 v{vFV}, s{sT}
    ''')
    A.wait0(lg=True)

    A.label('L_conv')
    vA0, vB, vAD, vYW, vYR, vYG = 10, 14, 16, 20, 21, 22
    A(f'''
    v_and_b32 v2, 15, v{vL}
    v_lshrrev_b32 v3, 4, v{vL}
    v_lshlrev_b32 v4, 3, v3
    v_sub_u32 v4, v2, v4
    v_add_u32 v4, 25, v4
    v_and_b32 v5, 1, v4
    v_mul_u32_u24 v5, {KC1+2}, v5
    v_lshl_add_u32 v5, v4, 1, v5
    s_mul_i32 s{sA}, s{sW}, {KCW}
    v_add_u32 v{vA0}, s{sA}, v5
    v_add_u32 v{vA0+1}, 1024, v{vA0}
    v_add_u32 v{vA0+2}, 2048, v{vA0}
    v_add_u32 v{vA0+3}, 3072, v{vA0}
    s_barrier
    ''')
    NPRE = opt.get('npre', 40)

    def afrag(q):
        o = 16 * (q & 15)
        A(f'ds_read2_b32 {a_(4*q,2)}, v{vA0+(q>>4)} offset0:{o} offset1:{o+1}')
        A(f'ds_read2_b32 {a_(4*q+2,2)}, v{vA0+(q>>4)} offset0:{o+2} offset1:{o+3}')
    for q in range(NPRE):
        afrag(q)
    publish_flag()
    stamp(3)
    for q in range(NPRE, 64):
        afrag(q)
    A(f'''
    v_sub_u32 v4, 16, v4
    s_bitcmp1_b32 s{sW}, 0
    s_cselect_b32 s{sA}, 16, 0
    s_lshr_b32 s{sSD}, s{sSD}, s{sA}
    s_and_b32 s{sSD}, s{sSD}, 0xffff
    v_and_b32 v5, 1, v4
    v_lshlrev_b32 v5, 4, v5
    v_lshlrev_b32 v5, v5, s{sSD}
    v_ashrrev_i32 v4, 1, v4
    ''')
    for m in range(4):
        A(f'v_cmp_eq_u32 vcc, {m}, v4')
        A.nop(2)
        A(f'v_cndmask_b32 v{vAD+m}, 0, v5, vcc')
    A(f'''
    s_mul_i32 s{sA}, s{sW}, {XBW}
    s_add_u32 s{sA}, s{sA}, {L_XB+32}
    v_lshlrev_b32 v{vB}, 5, v2
    v_lshl_add_u32 v{vB}, v3, 4, v{vB}
    v_add_u32 v{vB}, s{sA}, v{vB}
    s_add_u32 m0, s{sA}, 480
    s_lshl_b32 s{sA}, s{sW}, 10
    v_lshlrev_b32 v{vYW}, 5, v2
    v_lshl_add_u32 v{vYW}, v3, 3, v{vYW}
    v_add_u32 v{vYW}, s{sA}, v{vYW}
    v_lshlrev_b32 v{vYR}, 2, v0
    v_add_u32 v{vYR}, {L_YS}, v{vYR}
    s_mul_i32 s{sA}, s{sX}, 20
    s_add_u32 s{sA}, s{sA}, s{sJ}
    s_lshl_b32 s{sB}, s{sA}, 7
    s_add_u32 s{sB}, s{sB}, {W_Y}
    v_lshrrev_b32 v4, 3, v0
    v_and_b32 v5, 7, v0
    v_mul_u32_u24 v{vYG}, 20480, v4
    v_lshl_add_u32 v{vYG}, v5, 4, v{vYG}
    v_add_u32 v{vYG}, s{sB}, v{vYG}
    s_lshl_b32 s{sA}, s{sA}, 14
    s_lshl_b32 s{sB}, s{sW}, 12
    s_add_u32 s{sA}, s{sA}, s{sB}
    s_add_u32 s{sA}, s{sA}, {W_KVT}
    v_lshlrev_b32 v6, 4, v{vL}
    v_add_u32 v6, s{sA}, v6
    s_mul_i32 s{sA}, s{sX}, 3
    s_lshr_b32 s{sB}, s{sJ}, 3
    s_add_u32 s{sA}, s{sA}, s{sB}
    s_mul_i32 s{sA}, s{sA}, {32*FS1}
    s_add_u32 s{sA}, s{sA}, {W_FLAG1}
    v_and_b32 v7, 31, v{vL}
    v_mul_u32_u24 v7, {FS1}, v7
    v_add_u32 v7, s{sA}, v7
    ''')
    stamp(4)
    lab = spin_begin('kv')
    A(f'buffer_load_dword v4, v7, {s(R_WS,4)}, 0 offen sc1')
    A.wait0(vm=True)
    A(f'v_cmp_ne_u32 vcc, s{sT}, v4')
    spin_end(lab)
    stamp(5)
    A.vm_n = 0
    hx = [A.vm(f'buffer_load_dwordx4 v6, {s(R_WS,4)}, 0 offen offset:{1024*i} sc1 lds') for i in range(4)]
    A.wait0(lg=True)
    A.lg_n = 0

    BR, ACC, YP, YQ, YO = 32, 96, 112, 120, 124
    steps = []
    for p in range(4):
        t0, t1 = 2 * p, 2 * p + 1
        for b in range(t1 + 1):
            for r in range(8):
                mf = []
                if b <= t0:
                    mf.append((0, 8 * (t0 - b) + r))
                mf.append((1, 8 * (t1 - b) + r))
                if r == 0 and b == t0:
                    mf.append((0, -1))
                if r == 0 and b == t1:
                    mf.append((1, -1))
                steps.append(dict(p=p, b=b, r=r, w=8 * b - r, mf=mf))
    nst = len(steps)
    ev = {}
    pend = {}
    for p in range(4):
        last = max(i for i, st in enumerate(steps) if st['p'] == p)
        ev.setdefault(last - 8 + 6, []).append(('cvt', p, 0))
        ev.setdefault(last + 3, []).append(('cvt', p, 1))
        ev.setdefault(last + 7, []).append(('bar', p))
        ev.setdefault(last + 11, []).append(('st', p))
    hB = {}
    landed = [-1]

    def bread(i):
        st = steps[i]
        blk = st['b'] >> 1
        if blk > landed[0]:
            A.wait(vm=hx[blk])
            landed[0] = blk
        hB[i] = A.lg(f'ds_read_b128 {v(BR+4*(i%NB),4)}, v{vB} offset:{64*(st["w"]+7)}')

    def event(e):
        p = e[1]
        if e[0] == 'cvt':
            acc = ACC + 8 * (p & 1) + 4 * e[2]
            d = YP + 2 * e[2]
            A(f'v_cvt_pk_bf16_f32 v{d}, v{acc}, v{acc+1}')
            A(f'v_cvt_pk_bf16_f32 v{d+1}, v{acc+2}, v{acc+3}')
            pend[p] = A.lg(f'ds_write_b64 v{vYW}, {v(d,2)} offset:{L_YS+4096*p+512*e[2]}')
        elif e[0] == 'bar':
            A.wait(lg=pend[p])
            A('s_barrier')
            A.lg(f'ds_read2st64_b32 {v(YQ,2)}, v{vYR} offset0:{16*p} offset1:{16*p+4}')
            pend[p] = A.lg(f'ds_read2st64_b32 {v(YQ+2,2)}, v{vYR} offset0:{16*p+8} offset1:{16*p+12}')
        else:
            A.wait(lg=pend[p])
            A(f'v_perm_b32 v{YO}, v{YQ+1}, v{YQ}, s{sPLO}')
            A(f'v_perm_b32 v{YO+1}, v{YQ+3}, v{YQ+2}, s{sPLO}')
            A(f'v_perm_b32 v{YO+2}, v{YQ+1}, v{YQ}, s{sPHI}')
            A(f'v_perm_b32 v{YO+3}, v{YQ+3}, v{YQ+2}, s{sPHI}')
            A(f's_mov_b32 s{sA}, {655360*p}')
            A.vm(f'buffer_store_dwordx4 {v(YO,4)}, v{vYG}, {s(R_WS,4)}, s{sA} offen sc1')

    for i in range(PD):
        bread(i)
    started = set()
    for i, st in enumerate(steps):
        if i + PD < nst:
            bread(i + PD)
        A.wait(lg=hB[i])
        for (k, q) in st['mf']:
            acc = v(ACC + 8 * (st['p'] & 1) + 4 * k, 4)
            src = v(vAD, 4) if q < 0 else a_(4 * q, 4)
            c = acc if (st['p'], k) in started else '0'
            started.add((st['p'], k))
            A(f'v_mfma_f32_16x16x32_bf16 {acc}, {src}, {v(BR+4*(i%NB),4)}, {c}')
        for e in ev.pop(i, []):
            event(e)
    A.nop(8)
    for i in sorted(ev):
        for e in ev[i]:
            event(e)
    stamp(6)
    A('s_branch L_ln')

    A.label('L_loader_n')
    A.wait0(lg=True)
    A(f's_add_u32 s{sT}, s{sT}, 1')
    A(f's_and_b32 s{sTAG}, s{sT}, 0xffff')
    A(f's_cmp_ge_u32 s{sMI}, 60')
    A('s_cbranch_scc1 L_loader_nomod')
    srd(R_G1, P_C, 1280)
    srd(R_G2, P_WM, 4915200)
    A(f'''
    v_lshlrev_b32 v4, 3, v{vL}
    v_and_b32 v5, 31, v{vL}
    v_lshlrev_b32 v6, 3, v5
    buffer_load_dwordx2 v[16:17], v4, {s(R_G1,4)}, 0 offen
    buffer_load_dwordx2 v[18:19], v4, {s(R_G1,4)}, 0 offen offset:512
    buffer_load_dwordx2 v[20:21], v6, {s(R_G1,4)}, 0 offen offset:1024
    v_lshrrev_b32 v2, 3, v{vL}
    v_and_b32 v3, 6, v2
    v_xor_b32 v3, v3, v{vL}
    v_and_b32 v3, 7, v3
    v_mul_u32_u24 v7, 7680, v2
    v_lshl_add_u32 v7, v3, 4, v7
    s_lshl_b32 s{sA}, s{sMI}, 7
    v_add_u32 v7, s{sA}, v7
    ''')
    A.wait0(vm=True)
    dma_loop(7, R_G2, 80, 61440, L_WB1)
    for i in range(6):
        unpack(24 + 2 * i, 16 + i)
    for i in range(12):
        A(f'v_mul_f32 v{40+i}, 0xbfb8aa3b, v{24+i}')
    for i in range(12):
        A(f'v_exp_f32 v{40+i}, v{40+i}')
    for i in range(12):
        A(f'v_add_f32 v{40+i}, 1.0, v{40+i}')
    for i in range(12):
        A(f'v_rcp_f32 v{40+i}, v{40+i}')
    for i in range(12):
        A(f'v_mul_f32 v{24+i}, v{24+i}, v{40+i}')
    for i in range(6):
        A(f'v_cvt_pk_bf16_f32 v{16+i}, v{24+2*i}, v{25+2*i}')
    quadpos(4, vL, 2)
    A(f'v_add_u32 v4, {L_XA}, v4')
    quadpos(6, 5, 2)
    A(f'v_add_u32 v6, {L_XA}, v6')
    A(f'''
    ds_write_b64 v4, v[16:17]
    ds_write_b64 v4, v[18:19] offset:512
    ds_write_b64 v6, v[20:21] offset:1024
    s_cmp_eq_u32 s{sROLE}, 2
    s_cbranch_scc1 L_loader_f2
    ''')
    A.wait0(vm=True, lg=True)
    A('s_branch L_n1')
    A.label('L_loader_f2')
    srd(R_G1, P_WD, 2211840)
    A(f'''
    v_lshrrev_b32 v2, 1, v{vL}
    v_and_b32 v3, 1, v{vL}
    v_mul_u32_u24 v7, 1280, v2
    v_lshl_add_u32 v7, v3, 4, v7
    s_lshl_b32 s{sA}, s{sF}, 5
    v_add_u32 v7, s{sA}, v7
    v_mov_b32 v12, 0
    v_mov_b32 v13, 0
    v_mov_b32 v14, 0
    v_mov_b32 v15, 0
    v_lshlrev_b32 v2, 4, v{vL}
    v_add_u32 v2, {L_WB2+54*1024}, v2
    ds_write_b128 v2, v[12:15]
    ds_write_b128 v2, v[12:15] offset:1024
    ''')
    dma_loop(7, R_G1, 54, 40960, L_WB2)
    A('s_waitcnt vmcnt(54) lgkmcnt(0)')
    A('s_branch L_n1')

    def f1_addr():
        srd(R_G1, P_WG, 2211840)
        srd(R_G2, P_WU, 2211840)
        A(f'''
        v_lshrrev_b32 v2, 2, v{vL}
        v_bfe_u32 v3, v{vL}, 4, 1
        v_xor_b32 v3, v3, v{vL}
        v_and_b32 v3, 3, v3
        v_mul_u32_u24 v6, 3456, v2
        s_lshl_b32 s{sA}, s{sF}, 6
        v_add_u32 v6, s{sA}, v6
        v_xor_b32 v2, 2, v3
        v_lshl_add_u32 v7, v2, 4, v6
        v_lshl_add_u32 v6, v3, 4, v6
        ''')

    A.label('L_loader_nomod')
    A(f's_cmp_lg_u32 s{sROLE}, 1')
    A('s_cbranch_scc1 L_n1')
    f1_addr()
    dma_loop(6, R_G1, 40, 55296, L_WB1)
    dma_loop(7, R_G2, 40, 55296, L_WB1 + 40960)

    A.label('L_n1')
    vKH, vRS, vCC, vAV = 10, 11, 12, 13
    A(f'''
    v_lshrrev_b32 v{vKH}, 4, v{vL}
    v_bfe_u32 v{vRS}, v{vL}, 2, 3
    v_and_b32 v{vCC}, 3, v{vL}
    v_lshrrev_b32 v2, 5, v{vL}
    v_lshl_add_u32 v14, v2, 4, v{vRS}
    s_barrier
    s_cmp_ge_u32 s{sMI}, 60
    s_cbranch_scc1 L_n3
    ''')
    stamp(4)
    A(f'''
    v_lshrrev_b32 v2, 1, v{vRS}
    v_xor_b32 v2, s{sW}, v2
    v_lshlrev_b32 v4, 7, v14
    v_lshl_add_u32 v4, v2, 5, v4
    v_lshl_add_u32 v4, v{vCC}, 3, v4
    v_add_u32 v5, 40960, v4
    v_lshlrev_b32 v{vAV}, 4, v{vKH}
    v_add_u32 v{vAV}, {L_XA}, v{vAV}
    ''')
    A.lg_n = 0
    hq = []
    for q in range(20):
        base, o = (4, q * 4096) if q < 10 else (5, (q - 10) * 4096)
        A.lg(f'ds_read_b128 {v(16+4*q,4)}, v{vAV} offset:{64*q}')
        A.lg(f'ds_read_b64_tr_b16 {v(96+4*q,2)}, v{base} offset:{o}')
        hq.append(A.lg(f'ds_read_b64_tr_b16 {v(98+4*q,2)}, v{base} offset:{o+1024}'))
        if q >= 4:
            A.wait(lg=hq[q - 4])
            A(f'v_mfma_f32_16x16x32_bf16 v[180:183], {v(16+4*(q-4),4)}, {v(96+4*(q-4),4)}, {"0" if q == 4 else "v[180:183]"}')
    for q in range(16, 20):
        A.wait(lg=hq[q])
        A(f'v_mfma_f32_16x16x32_bf16 v[180:183], {v(16+4*q,4)}, {v(96+4*q,4)}, v[180:183]')
    A(f'''
    s_barrier
    s_lshl_b32 s{sA}, s{sMI}, 8
    s_lshl_b32 s{sB}, s{sW}, 6
    s_add_u32 s{sA}, s{sA}, s{sB}
    s_add_u32 s{sA}, s{sA}, {W_MOD}
    v_lshlrev_b32 v2, 2, v{vL}
    v_add_u32 v2, s{sA}, v2
    v_mov_b32 v3, s{sTAG}
    s_nop 0
    v_cvt_pk_bf16_f32 v4, v180, v180
    v_and_or_b32 v4, v4, s{sHI}, v3
    s_mov_b64 exec, 0xffff
    buffer_store_dword v4, v2, {s(R_WS,4)}, 0 offen sc1
    s_mov_b64 exec, -1
    ''')
    stamp(5)
    A(f's_cmp_lg_u32 s{sROLE}, 1')
    A('s_cbranch_scc1 L_n3')
    f1_addr()
    A(f's_mul_i32 s{sC}, s{sW}, 10240')
    A(f's_mul_i32 s{sD_}, s{sW}, 552960')
    dma_loop(6, R_G1, 10, 55296, s(sC), s(sD_))
    A(f's_add_u32 s{sC}, s{sC}, 40960')
    dma_loop(7, R_G2, 10, 55296, s(sC), s(sD_))
    A.label('L_n3')
    A.wait0(vm=True)
    A('s_barrier')
    A(f's_cmp_eq_u32 s{sROLE}, 2')
    A('s_cbranch_scc1 L_n3_f2')
    A(f'''
    v_lshrrev_b32 v2, 1, v{vCC}
    v_and_b32 v3, 2, v{vCC}
    v_and_b32 v4, 1, v{vKH}
    v_xor_b32 v3, v3, v4
    v_xor_b32 v3, s{sW}, v3
    v_mul_u32_u24 v4, 40960, v2
    v_lshl_add_u32 v4, v14, 6, v4
    v_lshl_add_u32 v4, v3, 4, v4
    v_and_b32 v2, 1, v{vCC}
    v_lshl_add_u32 v4, v2, 3, v4
    ''')
    for q in range(20):
        A(f'ds_read_b64_tr_b16 {a_(4*q,2)}, v4 offset:{2048*q}')
        A(f'ds_read_b64_tr_b16 {a_(4*q+2,2)}, v4 offset:{2048*q+512}')
    A('s_branch L_n4')
    A.label('L_n3_f2')
    A(f'''
    s_mul_i32 s{sA}, s{sW}, {448*32}
    s_add_u32 s{sA}, s{sA}, {L_WB2}
    v_lshlrev_b32 v4, 5, v14
    v_lshl_add_u32 v4, v{vCC}, 3, v4
    v_add_u32 v4, s{sA}, v4
    ''')
    for q in range(14):
        A(f'ds_read_b64_tr_b16 {a_(4*q,2)}, v4 offset:{1024*q}')
        A(f'ds_read_b64_tr_b16 {a_(4*q+2,2)}, v4 offset:{1024*q+256}')
    A.label('L_n4')
    A.wait0(lg=True)
    stamp(6)

    A.label('L_ln')
    QR, WRR, YR, MR, FC = 16, 26, 36, 46, 62
    QF, GH, CW, C1, SB, GB, T0, T1, T2 = 64, 84, 104, 124, 144, 164, 184, 204, 224
    vQ, vYA, vMG, vML, vMR, vFC, vTAU, vHL = 4, 5, 6, 7, 8, 9, 10, 11
    X0 = 244
    A(f'''
    v_and_b32 v{vHL}, 31, v{vL}
    v_lshrrev_b32 v{vTAU}, 5, v0
    s_lshr_b32 s{sA}, s{sJ}, 1
    s_lshl_b32 s{sA}, s{sA}, 3
    s_add_u32 s{sA}, s{sA}, s{sX}
    s_and_b32 s{sB}, s{sJ}, 1
    s_lshl_b32 s{sB}, s{sB}, 3
    s_mul_i32 s{sA}, s{sA}, 20480
    v_add_u32 v2, s{sB}, v{vTAU}
    v_mul_u32_u24 v{vQ}, 1280, v2
    v_lshlrev_b32 v3, 3, v{vHL}
    v_add3_u32 v{vQ}, v{vQ}, v3, s{sA}
    s_add_u32 s{sA}, s{sA}, {W_Y}
    v_lshlrev_b32 v{vYA}, 7, v{vHL}
    v_lshl_add_u32 v{vYA}, v2, 3, v{vYA}
    v_add_u32 v{vYA}, s{sA}, v{vYA}
    ''')
    A.vm_n = 0
    for i in range(5):
        hQ = A.vm(f'buffer_load_dwordx2 {v(QR+2*i,2)}, v{vQ}, {s(R_Q,4)}, 0 offen offset:{256*i}{NT}')
    for i in range(5):
        hW = A.vm(f'buffer_load_dwordx2 {v(WRR+2*i,2)}, v3, {s(R_WR,4)}, 0 offen offset:{256*i}')
    A(f'''
    v_min_u32 v2, 59, v{vL}
    s_mul_i32 s{sA}, s{sW}, 3840
    v_lshlrev_b32 v2, 4, v2
    v_add_u32 v2, s{sA}, v2
    v_add_u32 v{vMG}, {W_MOD}, v2
    v_add_u32 v{vML}, {L_MOD}, v2
    v_lshlrev_b32 v{vMR}, 4, v{vHL}
    v_add_u32 v{vMR}, {L_MOD}, v{vMR}
    v_min_u32 v2, 159, v0
    v_mul_u32_u24 v{vFC}, {FSC}, v2
    v_add_u32 v{vFC}, {W_FLAGC}, v{vFC}
    ''')
    lab = spin_begin('mod')
    for i in range(4):
        A(f'buffer_load_dwordx4 {v(MR+4*i,4)}, v{vMG}, {s(R_WS,4)}, 0 offen offset:{960*i} sc1')
    A(f'buffer_load_dword v{FC}, v{vFC}, {s(R_WS,4)}, 0 offen sc1')
    A.wait0(vm=True)
    A(f'v_xor_b32 v2, s{sTAG}, v{MR}')
    for i in range(1, 16):
        A(f'v_bitop3_b32 v2, v2, v{MR+i}, s{sTAG} bitop3:0xf6')
    A(f'v_and_b32 v2, 0xffff, v2')
    A(f'v_bitop3_b32 v2, v2, v{FC}, s{sT} bitop3:0xf6')
    A(f'v_cmp_ne_u32 vcc, 0, v2')
    spin_end(lab)
    stamp(7)
    for i in range(16):
        A(f'v_and_b32 v{MR+i}, s{sHI}, v{MR+i}')
    for i in range(4):
        A(f'ds_write_b128 v{vML}, {v(MR+4*i,4)} offset:{960*i}')
    for i in range(10):
        unpack(QF + 2 * i, QR + i)
    sum20(X0, QF, T0)
    red32([X0], X0 + 2)
    A(f'v_mul_f32 v{X0}, {hexf(1/640)}, v{X0}')
    A.wait0(lg=True)
    A('s_barrier')
    A.lg_n = 0
    hm = {}
    for seg, dst in ((1, T1), (0, T0), (2, T2), (4, C1), (3, SB), (5, GB)):
        for i in range(5):
            hm[seg] = A.lg(f'ds_read_b128 {v(dst+4*i,4)}, v{vMR} offset:{2560*seg+512*i}')
    for i in range(10):
        A(f'v_pk_add_f32 {v(GH+2*i,2)}, {v(QF+2*i,2)}, {v(X0,2)} op_sel_hi:[1,0] neg_lo:[0,1] neg_hi:[0,1]')
    dots20([(X0 + 2, GH, GH, X0 + 4)])
    red32([X0 + 2], X0 + 4)
    A(f'v_mov_b32 v{X0+4}, {hexf(1e-5)}')
    A(f'v_fmac_f32 v{X0+4}, {hexf(1/640)}, v{X0+2}')
    A(f'v_rsq_f32 v{X0+2}, v{X0+4}')
    for i in range(10):
        unpack(CW + 2 * i, WRR + i)
    A.wait0(lg=True)
    for i in range(10):
        A(f'v_pk_fma_f32 {v(T1+2*i,2)}, {v(T1+2*i,2)}, {v(X0+2,2)}, {v(X0+2,2)} op_sel_hi:[1,0,0]')
    for i in range(10):
        A(f'v_pk_fma_f32 {v(GH+2*i,2)}, {v(GH+2*i,2)}, {v(T1+2*i,2)}, {v(T0+2*i,2)}')
    for i in range(10):
        A(f'v_pk_mul_f32 {v(GH+2*i,2)}, {v(GH+2*i,2)}, {v(T2+2*i,2)}')
    vC2 = X0 + 8
    dots20([(vC2, SB, CW, X0 + 4)])
    for i in range(10):
        A(f'v_pk_add_f32 {v(C1+2*i,2)}, {v(C1+2*i,2)}, 1.0 op_sel_hi:[1,0]')
    for i in range(10):
        A(f'v_pk_mul_f32 {v(CW+2*i,2)}, {v(CW+2*i,2)}, {v(C1+2*i,2)}')
    red32([vC2], X0 + 4)
    vSC, vID = 12, 13
    A(f'''
    v_lshlrev_b32 v{vSC}, 2, v{vTAU}
    v_add_u32 v{vSC}, {L_SCR}, v{vSC}
    s_lshl_b32 s{sA}, s2, 3
    v_add_u32 v{vID}, s{sA}, v{vTAU}
    v_mov_b32 v14, {L_SCR}
    s_add_u32 s{sA}, s{sA}, {W_KEYS}
    v_mov_b32 v15, s{sA}
    ''')
    stamp(8)
    lab = spin_begin('y')
    for i in range(5):
        A(f'buffer_load_dwordx2 {v(YR+2*i,2)}, v{vYA}, {s(R_WS,4)}, {SOFF[i]} offen sc1')
    A.wait0(vm=True)
    A(f'v_max3_u32 v2, v{YR}, v{YR+1}, v{YR+2}')
    A(f'v_max3_u32 v3, v{YR+3}, v{YR+4}, v{YR+5}')
    A(f'v_max3_u32 v2, v2, v{YR+6}, v{YR+7}')
    A(f'v_max3_u32 v3, v3, v{YR+8}, v{YR+9}')
    A(f'v_max_u32 v2, v2, v3')
    A(f'v_cmp_eq_u32 vcc, -1, v2')
    spin_end(lab)
    stamp(9)
    X1, XC, H2 = T0, T1, T2
    for i in range(10):
        unpack(X1 + 2 * i, YR + i)
    for i in range(10):
        A(f'v_pk_fma_f32 {v(X1+2*i,2)}, {v(X1+2*i,2)}, {v(GH+2*i,2)}, {v(QF+2*i,2)}')
    sum20(X0, X1, H2)
    red32([X0], X0 + 2)
    A(f'v_mul_f32 v{X0}, {hexf(1/640)}, v{X0}')
    for i in range(10):
        A(f'v_pk_add_f32 {v(XC+2*i,2)}, {v(X1+2*i,2)}, {v(X0,2)} op_sel_hi:[1,0] neg_lo:[0,1] neg_hi:[0,1]')
    dots20([(X0 + 2, XC, XC, X0 + 4), (X0 + 3, XC, CW, X0 + 6)])
    red32([X0 + 2, X0 + 3], X0 + 4)
    A(f'''
    v_mov_b32 v{X0+4}, {hexf(1e-5)}
    v_fmac_f32 v{X0+4}, {hexf(1/640)}, v{X0+2}
    v_rsq_f32 v{X0+2}, v{X0+4}
    s_movk_i32 s{sA}, 0xf800
    v_fma_f32 v{X0+3}, v{X0+3}, v{X0+2}, v{vC2}
    v_ashrrev_i32 v2, 31, v{X0+3}
    v_or_b32 v2, 0x80000000, v2
    v_xor_b32 v2, v2, v{X0+3}
    v_and_or_b32 v{vID}, v2, s{sA}, v{vID}
    ds_write_b32 v{vSC}, v{vID}
    ''')
    for i in range(10):
        A(f'v_pk_mul_f32 {v(C1+2*i,2)}, {v(C1+2*i,2)}, {v(X0+2,2)} op_sel_hi:[1,0]')
    A.wait0(lg=True)
    A('s_barrier')
    A('ds_read_b128 v[16:19], v14')
    A('ds_read_b128 v[20:23], v14 offset:16')
    for i in range(10):
        A(f'v_pk_fma_f32 {v(H2+2*i,2)}, {v(XC+2*i,2)}, {v(C1+2*i,2)}, {v(SB+2*i,2)}')
    A(f'v_mov_b32 v3, s{sT}')
    A.wait0(lg=True)
    A(f'''
    v_max3_u32 v2, v16, v17, v18
    v_max3_u32 v19, v19, v20, v21
    v_max3_u32 v2, v2, v22, v23
    v_max_u32 v2, v2, v19
    s_cmp_lg_u32 s{sW}, 0
    s_cbranch_scc1 L_nokey
    s_mov_b64 exec, 1
    buffer_store_dwordx2 v[2:3], v15, {s(R_WS,4)}, 0 offen sc1
    s_mov_b64 exec, -1
    ''')
    A.label('L_nokey')
    stamp(10)
    vRO = 12
    A(f'''
    v_cmp_eq_u32 s[{sC+1}:{sC+2}], v2, v{vID}
    s_mul_i32 s{sA}, s2, 2560
    v_lshlrev_b32 v{vRO}, 4, v{vHL}
    v_add_u32 v{vRO}, s{sA}, v{vRO}
    v_mov_b32 v3, s{sTAG}
    s_cmp_eq_u64 s[{sC+1}:{sC+2}], 0
    s_cbranch_scc1 L_norow
    s_mov_b64 exec, s[{sC+1}:{sC+2}]
    s_mov_b32 s{sA}, {W_ROWS}
    ''')
    for i in range(5):
        for k in range(2):
            A(f'v_cvt_pk_bf16_f32 v2, v{H2+4*i+2*k}, v{H2+4*i+2*k+1}')
            A(f'v_lshl_or_b32 v{16+4*i+2*k}, v2, 16, v3')
            A(f'v_and_or_b32 v{17+4*i+2*k}, v2, s{sHI}, v3')
        A(f'buffer_store_dwordx4 {v(16+4*i,4)}, v{vRO}, {s(R_WS,4)}, s{sA} offen offset:{512*i} sc1')
    A('s_mov_b64 exec, -1')
    A.label('L_norow')
    for i in range(10):
        A(f'v_pk_fma_f32 {v(X1+2*i,2)}, {v(GB+2*i,2)}, {v(H2+2*i,2)}, {v(X1+2*i,2)}')
    for i in range(5):
        A(f'v_cvt_pk_bf16_f32 v{40+2*i}, v{X1+4*i}, v{X1+4*i+1}')
        A(f'v_cvt_pk_bf16_f32 v{41+2*i}, v{X1+4*i+2}, v{X1+4*i+3}')
        A(f'buffer_store_dwordx2 {v(40+2*i,2)}, v{vQ}, {s(R_OUT,4)}, 0 offen offset:{256*i} sc1')
    A(f'''
    s_cmp_eq_u64 s[{sC+1}:{sC+2}], 0
    s_cbranch_scc1 L_nobase
    s_mov_b64 exec, s[{sC+1}:{sC+2}]
    s_movk_i32 s{sB}, 0xff
    s_mov_b32 s{sA}, {W_BASE}
    ''')
    for i in range(20):
        A(f'v_bfi_b32 v{X1+i}, s{sB}, v3, v{X1+i}')
    A.wait0(vm=True)
    for i in range(5):
        A(f'buffer_store_dwordx4 {v(X1+4*i,4)}, v{vRO}, {s(R_WS,4)}, s{sA} offen offset:{512*i} sc1')
    A('s_mov_b64 exec, -1')
    A.label('L_nobase')
    stamp(11)
    A(f'''
    s_sub_u32 s{sA}, s{sROLE}, 1
    s_cmp_ge_u32 s{sA}, 2
    s_cbranch_scc1 L_fin
    ''')

    vXW, vXR = 6, 7
    A(f'''
    v_lshlrev_b32 v4, 4, v{vL}
    s_mov_b32 s{sB}, {W_KEYS}
    s_mul_i32 s{sA}, s{sW}, {XAW}
    s_add_u32 s{sA}, s{sA}, {L_XA}
    v_lshrrev_b32 v{vXR}, 4, v{vL}
    v_lshlrev_b32 v{vXR}, 4, v{vXR}
    v_add_u32 v{vXR}, s{sA}, v{vXR}
    ''')
    quadpos(vXW, vL, 2)
    A(f'v_and_b32 v8, 255, v{vXW}')
    A(f'v_add_u32 v{vXW}, s{sA}, v{vXW}')
    A(f'v_add_u32 v8, s{sA}, v8')
    lab = spin_begin('key')
    A(f'buffer_load_dwordx4 v[16:19], v4, {s(R_WS,4)}, s{sB} offen sc1')
    A(f'buffer_load_dwordx4 v[20:23], v4, {s(R_WS,4)}, s{sB} offen offset:1024 sc1')
    A.wait0(vm=True)
    A(f'''
    v_xor_b32 v2, s{sT}, v17
    v_bitop3_b32 v2, v2, v19, s{sT} bitop3:0xf6
    v_bitop3_b32 v2, v2, v21, s{sT} bitop3:0xf6
    v_bitop3_b32 v2, v2, v23, s{sT} bitop3:0xf6
    v_max3_u32 v3, v16, v18, v20
    v_cmp_ne_u32 vcc, 0, v2
    v_max_u32 v3, v3, v22
    ''')
    spin_end(lab)
    for sh in (8, 4, 2, 1):
        A.nop(2)
        A(f'v_max_u32_dpp v3, v3, v3 row_ror:{sh} row_mask:0xf bank_mask:0xf')
    A(f'''
    s_nop 0
    v_readlane_b32 s{sKEY}, v3, 0
    v_readlane_b32 s{sA}, v3, 16
    v_readlane_b32 s{sB}, v3, 32
    v_readlane_b32 s{sC}, v3, 48
    s_max_u32 s{sKEY}, s{sKEY}, s{sA}
    s_max_u32 s{sB}, s{sB}, s{sC}
    s_max_u32 s{sKEY}, s{sKEY}, s{sB}
    s_bfe_u32 s{sSLOT}, s{sKEY}, 0x80003
    s_mul_i32 s{sE}, s{sSLOT}, 2560
    ''')
    stamp(12)
    A(f's_cmp_eq_u32 s{sROLE}, 2')
    A('s_cbranch_scc1 L_f2')

    A(f'''
    s_add_u32 s{sE}, s{sE}, {W_ROWS}
    v_and_b32 v5, 511, v4
    ''')
    lab = spin_begin('row')
    A(f'buffer_load_dwordx4 v[16:19], v4, {s(R_WS,4)}, s{sE} offen sc1')
    A(f'buffer_load_dwordx4 v[20:23], v4, {s(R_WS,4)}, s{sE} offen offset:1024 sc1')
    A(f'buffer_load_dwordx4 v[24:27], v5, {s(R_WS,4)}, s{sE} offen offset:2048 sc1')
    A.wait0(vm=True)
    for i in range(3):
        A(f'v_perm_b32 v{28+2*i}, v{17+4*i}, v{16+4*i}, s{sPHI}')
        A(f'v_perm_b32 v{29+2*i}, v{19+4*i}, v{18+4*i}, s{sPHI}')
        A(f'ds_write_b64 v{vXW if i < 2 else 8}, {v(28+2*i,2)} offset:{512*i}')
    A(f'v_xor_b32 v2, s{sTAG}, v16')
    for r in (19, 20, 23, 24, 27):
        A(f'v_bitop3_b32 v2, v2, v{r}, s{sTAG} bitop3:0xf6')
    A('v_and_b32 v2, 0xffff, v2')
    A('v_cmp_ne_u32 vcc, 0, v2')
    spin_end(lab)

    def gemv(n):
        A.wait0(lg=True)
        A.lg_n = 0
        h = []
        for q in range(n):
            h.append(A.lg(f'ds_read_b128 {v(64+4*q,4)}, v{vXR} offset:{64*q}'))
            if q >= 8:
                A.wait(lg=h[q - 8])
                A(f'v_mfma_f32_16x16x32_bf16 v[40:43], {v(64+4*(q-8),4)}, {a_(4*(q-8),4)}, {"0" if q == 8 else "v[40:43]"}')
        for q in range(n - 8, n):
            A.wait(lg=h[q])
            A(f'v_mfma_f32_16x16x32_bf16 v[40:43], {v(64+4*q,4)}, {a_(4*q,4)}, v[40:43]')

    stamp(13)
    gemv(20)
    A(f'''
    s_lshl_b32 s{sA}, s{sF}, 7
    s_lshl_b32 s{sB}, s{sW}, 5
    s_add_u32 s{sA}, s{sA}, s{sB}
    s_add_u32 s{sA}, s{sA}, {W_HID}
    v_lshlrev_b32 v2, 2, v{vL}
    v_mov_b32 v3, s{sTAG}
    s_nop 1
    v_mul_f32 v44, 0xbfb8aa3b, v40
    v_exp_f32 v44, v44
    v_mul_f32_dpp v45, v41, v40 row_ror:8 row_mask:0xf bank_mask:0xf
    v_add_f32 v44, 1.0, v44
    v_rcp_f32 v44, v44
    s_mov_b64 exec, 0xff
    v_mul_f32 v44, v44, v45
    v_cvt_pk_bf16_f32 v44, v44, v44
    v_and_or_b32 v44, v44, s{sHI}, v3
    buffer_store_dword v44, v2, {s(R_WS,4)}, s{sA} offen sc1
    s_mov_b64 exec, -1
    ''')
    stamp(14)
    A('s_branch L_fin')

    A.label('L_f2')
    A(f'''
    s_lshl_b32 s{sA}, s{sF}, 6
    s_add_u32 s{sE}, s{sE}, s{sA}
    s_add_u32 s{sE}, s{sE}, {W_BASE}
    v_and_b32 v9, 15, v{vL}
    v_lshlrev_b32 v10, 2, v9
    s_add_u32 s{sA}, s{sA}, {L_MOD+5*2560}
    v_add_u32 v2, s{sA}, v10
    ds_read_b32 v50, v2
    s_mul_i32 s{sD_}, s{sW}, 1792
    s_add_u32 s{sD_}, s{sD_}, {W_HID}
    s_cmp_eq_u32 s{sW}, 3
    s_cselect_b32 s{sA}, 31, 47
    v_min_u32 v5, s{sA}, v{vL}
    v_lshlrev_b32 v5, 4, v5
    s_or_b32 s{sA}, s{sF}, s{sW}
    s_cmp_lg_u32 s{sA}, 0
    s_cbranch_scc1 L_noepoch
    v_mov_b32 v2, {W_EPOCH}
    v_mov_b32 v3, s{sT}
    s_mov_b64 exec, 1
    buffer_store_dword v3, v2, {s(R_WS,4)}, 0 offen sc1
    s_mov_b64 exec, -1
    ''')
    A.label('L_noepoch')
    A(f'''
    s_ashr_i32 s{sA}, s{sKEY}, 31
    s_not_b32 s{sA}, s{sA}
    s_or_b32 s{sA}, s{sA}, 0x80000000
    s_xor_b32 s{sA}, s{sA}, s{sKEY}
    v_mov_b32 v51, 0xbfb8aa3b
    v_mul_f32 v51, s{sA}, v51
    v_exp_f32 v51, v51
    s_lshr_b32 s{sA}, s{sSLOT}, 4
    v_add_f32 v51, 1.0, v51
    v_rcp_f32 v51, v51
    s_lshl_b32 s{sA}, s{sA}, 3
    s_and_b32 s{sB}, s{sSLOT}, 7
    s_add_u32 s{sA}, s{sA}, s{sB}
    s_lshl_b32 s{sA}, s{sA}, 4
    s_and_b32 s{sB}, s{sSLOT}, 8
    s_add_u32 s{sA}, s{sA}, s{sB}
    s_and_b32 s{sB}, s{sKEY}, 7
    s_add_u32 s{sA}, s{sA}, s{sB}
    s_mul_i32 s{sA}, s{sA}, 1280
    s_lshl_b32 s{sB}, s{sF}, 5
    s_add_u32 s{sSLOT}, s{sA}, s{sB}
    v_lshlrev_b32 v11, 1, v9
    s_lshl_b32 s{sA}, s{sW}, 6
    s_add_u32 s{sA}, s{sA}, {L_SCR+64}
    v_add_u32 v12, s{sA}, v10
    v_add_u32 v13, {L_SCR+64}, v10
    ''')
    A.wait0(lg=True)
    A('v_mul_f32 v51, v51, v50')
    lab = spin_begin('hid')
    A(f'buffer_load_dword v52, v10, {s(R_WS,4)}, s{sE} offen sc1')
    A(f'buffer_load_dwordx4 v[16:19], v4, {s(R_WS,4)}, s{sD_} offen sc1')
    A(f'buffer_load_dwordx4 v[20:23], v5, {s(R_WS,4)}, s{sD_} offen offset:1024 sc1')
    A.wait0(vm=True)
    for i in range(2):
        A(f'v_perm_b32 v{28+2*i}, v{17+4*i}, v{16+4*i}, s{sPHI}')
        A(f'v_perm_b32 v{29+2*i}, v{19+4*i}, v{18+4*i}, s{sPHI}')
        A(f'ds_write_b64 v{vXW}, {v(28+2*i,2)} offset:{512*i}')
    A(f'v_xor_b32 v2, s{sTAG}, v52')
    A('v_and_b32 v2, 0xff, v2')
    for r in range(16, 24):
        A(f'v_bitop3_b32 v2, v2, v{r}, s{sTAG} bitop3:0xf6')
    A('v_and_b32 v2, 0xffff, v2')
    A('v_cmp_ne_u32 vcc, 0, v2')
    spin_end(lab)
    stamp(13)
    gemv(14)
    A.nop(8)
    A('ds_write_b32 v12, v40')
    A.wait0(lg=True)
    A(f'''
    s_barrier
    s_cmp_lg_u32 s{sW}, 0
    s_cbranch_scc1 L_fin
    ds_read2_b32 v[44:45], v13 offset0:0 offset1:16
    ds_read2_b32 v[46:47], v13 offset0:32 offset1:48
    v_and_b32 v52, 0xffffff00, v52
    s_waitcnt lgkmcnt(0)
    v_add_f32 v44, v44, v45
    v_add_f32 v46, v46, v47
    v_add_f32 v44, v44, v46
    v_fma_f32 v44, v44, v51, v52
    v_cvt_pk_bf16_f32 v44, v44, v44
    s_mov_b64 exec, 0xffff
    buffer_store_short v44, v11, {s(R_OUT,4)}, s{sSLOT} offen sc1
    s_mov_b64 exec, -1
    ''')
    stamp(14)
    A.label('L_fin')
    if opt.get('leak') is not None:
        A.wait0(vm=True)
        stamp(15)
        A.nop(2)
        A(f'v_readlane_b32 s{sA}, v{vSTAMP}, 0')
        A(f'v_readlane_b32 s{sB}, v{vSTAMP}, {opt["leak"]}')
        A(f's_cmp_eq_u32 s{sB}, 0')
        A(f's_cselect_b32 s{sB}, s{sA}, s{sB}')
        A(f's_sub_u32 s{sB}, s{sB}, s{sA}')
        A(f's_min_u32 s{sB}, s{sB}, 10000')
        A(f's_mul_i32 s{sB}, s{sB}, 10')
        A(f's_add_u32 s{sB}, s{sB}, 6000')
        A.label('L_leak')
        A(f's_memrealtime {s(sST,2)}')
        A.wait0(lg=True)
        A(f's_sub_u32 s{sC}, s{sST}, s{sA}')
        A(f's_cmp_lt_u32 s{sC}, s{sB}')
        A('s_cbranch_scc1 L_leak')
    elif stamps:
        A.wait0(vm=True)
        stamp(15)
        A(f'''
        s_lshl_b32 s{sA}, s2, 2
        s_add_u32 s{sA}, s{sA}, s{sW}
        s_lshl_b32 s{sA}, s{sA}, 8
        s_add_u32 s{sA}, s{sA}, {W_STAMP}
        v_lshlrev_b32 v2, 2, v{vL}
        buffer_store_dword v{vSTAMP}, v2, {s(R_WS,4)}, s{sA} offen
        ''')
    A.label('L_end')
    A('s_endpgm')
    return A


def hexf(x):
    import struct
    return hex(struct.unpack('<I', struct.pack('<f', x))[0])


def build(opt):
    A = gen(opt)
    errs = check(A.lines)
    for e in errs:
        print('CHECK:', e, file=sys.stderr)
    ref = open(f'cdna_kernels/{NAME}.s.ref').read().split('\n')
    head = [ln for ln in ref if ln.startswith(';') and '@launch' not in ln and 'Override' not in ln and 'grid=ceil' not in ln]
    k = NAME + '_kernel'
    txt = '\n'.join(head) + f'''
; @launch grid=(256,1,1) block=(256,1,1) lds={L_TOTAL}
.amdgcn_target "amdgcn-amd-amdhsa--gfx950"
.text
.globl {k}
.p2align 8
.type {k},@function
{k}:
''' + A.text() + f'''.section .rodata,"a"
.p2align 6
.amdhsa_kernel {k}
  .amdhsa_next_free_vgpr 512
  .amdhsa_next_free_sgpr 102
  .amdhsa_accum_offset 256
  .amdhsa_group_segment_fixed_size 0
  .amdhsa_kernarg_size 128
  .amdhsa_user_sgpr_count 2
  .amdhsa_user_sgpr_kernarg_segment_ptr 1
  .amdhsa_system_sgpr_workgroup_id_x 1
  .amdhsa_float_denorm_mode_32 3
.end_amdhsa_kernel
'''
    return txt, errs


if __name__ == '__main__':
    out = sys.argv[1]
    opt = {}
    for a in sys.argv[2:]:
        k_, val = a.split('=')
        opt[k_] = int(val)
    txt, errs = build(opt)
    open(out, 'w').write(txt)
    sys.exit(1 if errs else 0)
```

```python
import sys
from asmlib import Asm, v, a_, s, check

NAME = 'adaLN_cond__ssm_conv_h3__moe_arch_mod__prompt'

W_EPOCH = 0
W_FLAG1 = 0x1000
W_FLAGC = 0x1A000
W_KEYS  = 0x20000
W_MOD   = 0x22000
W_HID   = 0x26000
W_ROWS  = 0x30000
W_BASE  = 0xD0000
W_KVT   = 0x200000
W_Y     = 0x500000
W_STAMP = 0x800000
W_SIZE  = 0x900000

L_KC, KCW, KC1 = 0, 8320, 4160
L_XB, XBW = 33280, 4608
L_YS = 51712
L_WB1 = 0
L_WB2 = 81920
L_XA, XAW = 139264, 1280
L_MOD = 144384
L_SCR = 159744
L_TOTAL = 160256

P_Q, P_K, P_V, P_SH, P_SK, P_SD, P_BX, P_WR = 4, 6, 8, 10, 12, 14, 16, 18
P_WG, P_WU, P_WD, P_C, P_WM, P_OUT, P_DBG, P_WS = 20, 22, 24, 26, 28, 30, 32, 34
R_K, R_V, R_WS, R_Q, R_OUT, R_G1, R_G2, R_SH, R_WR = 36, 40, 44, 48, 52, 56, 60, 64, 68
sX, sJ, sW, sT = 72, 73, 74, 75
sC4, sC8, sC12, sC16, sC5120 = 76, 77, 78, 79, 80
sA, sB, sC, sD_, sE = 81, 82, 83, 84, 85
sSD, sKEY, sSLOT = 86, 87, 88
sSPIN, sHI, sPLO, sPHI, sTAG, sF, sROLE, sMI = 90, 91, 92, 93, 94, 95, 96, 97
sST = 98
SOFF = ['0', s(sC4), s(sC8), s(sC12), s(sC16)]
vL = 1
vSTAMP = 255
SPIN = 0x20000


def gen(opt):
    FS1 = opt.get('fs1', 16)
    FSC = opt.get('fsc', 16)
    PD = opt.get('pd', 8)
    NB = PD + 2
    stamps = opt.get('stamps', False)
    A = Asm()
    NT = ' nt' if opt.get('nt') else ''

    def stamp(k):
        if not stamps:
            return
        if opt.get('leak') is not None and k != opt['leak']:
            return
        A(f's_memrealtime {s(sST,2)}')
        A.wait0(lg=True)
        A(f'v_writelane_b32 v{vSTAMP}, s{sST}, {k}')

    def srd(r, p, size):
        A(f's_mov_b64 {s(r,2)}, {s(p,2)}')
        A(f's_mov_b32 s{r+2}, {size}')
        A(f's_mov_b32 s{r+3}, 0x20000')

    def spin_begin(name):
        lab = A.newlabel(name)
        A(f's_mov_b32 s{sSPIN}, {SPIN}')
        A.label(lab)
        return lab

    def spin_end(lab):
        ok = lab + '_ok'
        A(f's_cbranch_vccz {ok}')
        A(f's_sub_u32 s{sSPIN}, s{sSPIN}, 1')
        A(f's_cbranch_scc0 {lab}')
        A.label(ok)

    def unpack(dst, src):
        A(f'v_lshlrev_b32 v{dst}, 16, v{src}')
        A(f'v_and_b32 v{dst+1}, s{sHI}, v{src}')

    def red32(rs, tmp, op='add_f32'):
        pad = max(0, 2 - (len(rs) - 1))
        for sh in (8, 4, 2, 1):
            A.nop(pad if sh != 8 else 2)
            for r in rs:
                A(f'v_{op}_dpp v{r}, v{r}, v{r} row_ror:{sh} row_mask:0xf bank_mask:0xf')
        for i, r in enumerate(rs):
            A(f'v_mov_b32 v{tmp+i}, v{r}')
        A.nop(2)
        for i, r in enumerate(rs):
            A(f'v_permlane16_swap_b32 v{tmp+i}, v{r}')
        for i, r in enumerate(rs):
            A(f'v_{op} v{r}, v{tmp+i}, v{r}')

    def sum20(dst, src, tmp):
        for i in range(5):
            A(f'v_pk_add_f32 {v(tmp+2*i,2)}, {v(src+4*i,2)}, {v(src+4*i+2,2)}')
        A(f'v_pk_add_f32 {v(tmp,2)}, {v(tmp,2)}, {v(tmp+2,2)}')
        A(f'v_pk_add_f32 {v(tmp+4,2)}, {v(tmp+4,2)}, {v(tmp+6,2)}')
        A(f'v_pk_add_f32 {v(tmp,2)}, {v(tmp,2)}, {v(tmp+8,2)}')
        A(f'v_pk_add_f32 {v(tmp,2)}, {v(tmp,2)}, {v(tmp+4,2)}')
        A(f'v_add_f32 v{dst}, v{tmp}, v{tmp+1}')

    def dots20(items):
        for i in range(10):
            for (d, x, y, t) in items:
                if i == 0:
                    A(f'v_pk_mul_f32 {v(t,2)}, {v(x,2)}, {v(y,2)}')
                else:
                    A(f'v_pk_fma_f32 {v(t,2)}, {v(x+2*i,2)}, {v(y+2*i,2)}, {v(t,2)}')
        for (d, x, y, t) in items:
            A(f'v_add_f32 v{d}, v{t}, v{t+1}')

    def quadpos(dst, src, tmp):
        A(f'v_and_b32 v{tmp}, 1, v{src}')
        A(f'v_bfe_u32 v{dst}, v{src}, 1, 1')
        A(f'v_lshl_or_b32 v{dst}, v{tmp}, 1, v{dst}')
        A(f'v_and_b32 v{tmp}, -4, v{src}')
        A(f'v_or_b32 v{dst}, v{tmp}, v{dst}')
        A(f'v_lshlrev_b32 v{dst}, 3, v{dst}')

    def dma_loop(voff, r, n, gstep, lds0, g0=None):
        lab = A.newlabel('dma')
        A(f's_mov_b32 m0, {lds0}')
        A(f's_mov_b32 s{sA}, {g0 if g0 is not None else 0}')
        A(f's_mov_b32 s{sB}, {n}')
        A.label(lab)
        A(f'buffer_load_dwordx4 v{voff}, {s(r,4)}, s{sA} offen{NT} lds')
        A(f's_add_u32 s{sA}, s{sA}, {gstep}')
        A(f's_add_u32 m0, m0, 1024')
        A(f's_sub_u32 s{sB}, s{sB}, 1')
        A(f's_cmp_lg_u32 s{sB}, 0')
        A(f's_cbranch_scc1 {lab}')

    A('s_cmp_ge_u32 s2, 256')
    A('s_cbranch_scc1 L_end')
    A('s_load_dwordx16 s[4:19], s[0:1], 0')
    A('s_load_dwordx16 s[20:35], s[0:1], 64')
    if opt.get('pf'):
        A('s_getpc_b64 s[36:37]')
        A.label('L_pc')
        A('v_lshlrev_b32 v3, 7, v0')
        A('v_min_u32 v3, L_end-L_pc, v3')
        A('global_load_dword v254, v3, s[36:37]')
    if stamps:
        A(f's_memrealtime {s(sST,2)}')
        A(f'v_mov_b32 v{vSTAMP}, 0')
    A(f'v_lshrrev_b32 v2, 6, v0')
    A(f'v_and_b32 v{vL}, 63, v0')
    A(f's_and_b32 s{sX}, s2, 7')
    A(f'v_readfirstlane_b32 s{sW}, v2')
    A(f's_lshr_b32 s{sJ}, s2, 3')
    for r, c in ((sC4, 4096), (sC8, 8192), (sC12, 12288), (sC16, 16384), (sC5120, 5120),
                 (sHI, 0xffff0000), (sPLO, 0x05040100), (sPHI, 0x07060302)):
        A(f's_mov_b32 s{r}, {hex(c)}')
    A(f'''
    s_mul_i32 s{sA}, s{sX}, 7
    s_add_u32 s{sA}, s{sA}, s{sJ}
    s_cmp_lt_u32 s{sJ}, 23
    s_cselect_b32 s{sB}, 20, 25
    s_sub_u32 s{sF}, s{sA}, s{sB}
    s_cmp_lt_u32 s{sF}, 54
    s_cselect_b32 s{sROLE}, 1, 3
    s_sub_u32 s{sA}, s2, 120
    s_cmp_lt_u32 s{sJ}, 23
    s_cselect_b32 s{sMI}, s{sA}, 99
    s_mul_i32 s{sA}, s{sX}, 5
    s_add_u32 s{sA}, s{sA}, s{sJ}
    s_sub_u32 s{sA}, s{sA}, 23
    s_sub_u32 s{sB}, s2, 184
    s_cmp_lt_u32 s{sB}, 40
    s_cselect_b32 s{sF}, s{sA}, s{sF}
    s_cselect_b32 s{sMI}, s{sB}, s{sMI}
    s_cselect_b32 s{sROLE}, 2, s{sROLE}
    s_cmp_lt_u32 s{sJ}, 20
    s_cselect_b32 s{sROLE}, 0, s{sROLE}
    ''')
    vM, vH, vS, vT = 4, 5, 6, 7
    A(f'''
    v_and_b32 v2, 7, v{vL}
    v_lshrrev_b32 v3, 3, v{vL}
    s_mul_i32 s{sA}, s{sJ}, 81920
    s_mul_i32 s{sB}, s{sX}, 160
    s_lshl_b32 s{sC}, s{sW}, 6
    s_add_u32 s{sA}, s{sA}, s{sB}
    s_add_u32 s{sA}, s{sA}, s{sC}
    v_mul_u32_u24 v{vM}, 10240, v2
    v_lshl_add_u32 v{vM}, v3, 3, v{vM}
    v_add_u32 v{vM}, s{sA}, v{vM}
    v_subrev_u32 v{vH}, 3840, v{vM}
    s_add_u32 s{sB}, s{sB}, s{sC}
    s_lshl_b32 s{sB}, s{sB}, 2
    v_lshlrev_b32 v{vS}, 5, v3
    v_add_u32 v{vS}, s{sB}, v{vS}
    s_lshl_b32 s{sB}, s{sB}, 9
    s_lshl_b32 s{sC}, s{sJ}, 7
    s_add_u32 s{sB}, s{sB}, s{sC}
    s_add_u32 s{sB}, s{sB}, {W_KVT}
    v_lshlrev_b32 v{vT}, 14, v3
    v_lshl_add_u32 v{vT}, v2, 4, v{vT}
    v_add_u32 v{vT}, s{sB}, v{vT}
    ''')
    A.wait0(lg=True)
    if stamps:
        A(f'v_writelane_b32 v{vSTAMP}, s{sST}, 0')
    if opt.get('wsoff'):
        A(f's_add_u32 s{P_WS}, s{P_WS}, {opt["wsoff"]<<20}')
        A(f's_addc_u32 s{P_WS+1}, s{P_WS+1}, 0')
    srd(R_K, P_K, 2621440)
    srd(R_V, P_V, 2621440)
    srd(R_SH, P_SH, 5120)
    srd(R_WS, P_WS, W_SIZE)
    srd(R_Q, P_Q, 2621440)
    srd(R_OUT, P_OUT, 2621440)
    srd(R_WR, P_WR, 1280)
    dg = opt.get('diag')
    if dg is not None:
        A('s_mov_b32 s89, 0')
        A('s_cmp_lg_u32 s2, 100')
        A('s_cbranch_scc1 L_dg_done')
        A('v_lshlrev_b32 v20, 2, v1')
        if dg in (1, 2, 3, 6, 7):
            src = {1: (P_WM, 3000000), 2: (P_WS, 0x700000), 3: (P_WS, 0xF000000), 6: (P_Q, 1000000), 7: (P_OUT, 1000000)}[dg]
            A(f'v_add_u32 v20, {src[1]}, v20')
            A(f'global_load_dword v21, v20, {s(src[0],2)}')
            A('s_waitcnt vmcnt(0)')
            A('s_memtime s[100:101]')
            A('s_waitcnt lgkmcnt(0)')
            A('s_mov_b32 s89, s100')
            A(f'global_load_dword v21, v20, {s(src[0],2)} offset:2048')
            A('s_waitcnt vmcnt(0)')
            A('s_memtime s[100:101]')
            A('s_waitcnt lgkmcnt(0)')
            A('s_sub_u32 s89, s100, s89')
        if dg == 4:
            A('s_memtime s[100:101]')
            A('s_waitcnt lgkmcnt(0)')
            A('s_mov_b32 s89, s100')
            for i in range(64):
                A(f's_branch L_dgb{i}')
                for _ in range(31):
                    A('s_nop 0')
                A.label(f'L_dgb{i}')
            A('s_memtime s[100:101]')
            A('s_waitcnt lgkmcnt(0)')
            A('s_sub_u32 s89, s100, s89')
        if dg == 5:
            A('s_memrealtime s[98:99]')
            A('s_memtime s[100:101]')
            A('s_waitcnt lgkmcnt(0)')
            A('s_mov_b32 s89, s100')
            A('s_add_u32 s81, s98, 100')
            A.label('L_dgc')
            A('s_memrealtime s[98:99]')
            A('s_memtime s[100:101]')
            A('s_waitcnt lgkmcnt(0)')
            A('s_cmp_lt_u32 s98, s81')
            A('s_cbranch_scc1 L_dgc')
            A('s_sub_u32 s89, s100, s89')
        A.label('L_dg_done')
    A(f's_load_dword s{sT}, {s(P_WS,2)}, {W_EPOCH}')
    A(f'''
    s_mul_i32 s{sA}, s{sX}, 80
    s_lshl_b32 s{sB}, s{sJ}, 2
    s_add_u32 s{sA}, s{sA}, s{sB}
    s_add_u32 s{sA}, s{sA}, s{sW}
    s_min_u32 s{sA}, s{sA}, 639
    s_lshr_b32 s{sA}, s{sA}, 1
    s_lshl_b32 s{sA}, s{sA}, 2
    s_load_dword s{sSD}, {s(P_SD,2)}, s{sA}
    s_cmp_eq_u32 s{sW}, 3
    s_cbranch_scc1 L_loader
    ''')

    KR, VR, SR, WF, KF, VF, KS, KO = 16, 38, 54, 64, 80, 124, 156, 188
    A(f's_cmp_eq_u32 s{sW}, 2')
    A(f's_cselect_b32 exec_hi, 0, -1')
    A.vm_n = 0
    A.vm(f'buffer_load_dwordx4 {v(SR,4)}, v{vS}, {s(R_SH,4)}, 0 offen')
    hS = A.vm(f'buffer_load_dwordx4 {v(SR+4,4)}, v{vS}, {s(R_SH,4)}, 0 offen offset:16')
    hK = []
    for i in range(3):
        hK.append(A.vm(f'buffer_load_dwordx2 {v(KR+2*i,2)}, v{vH}, {s(R_K,4)}, 0 offen offset:{1280*i}{NT}'))
    for i in range(8):
        so = '0' if i < 4 else s(sC5120)
        hK.append(A.vm(f'buffer_load_dwordx2 {v(KR+6+2*i,2)}, v{vM}, {s(R_K,4)}, {so} offen offset:{1280*(i&3)}{NT}'))
    hV = []
    for i in range(8):
        so = '0' if i < 4 else s(sC5120)
        hV.append(A.vm(f'buffer_load_dwordx2 {v(VR+2*i,2)}, v{vM}, {s(R_V,4)}, {so} offen offset:{1280*(i&3)}{NT}'))
    A.wait(vm=hS)
    for c in range(4):
        A(f'v_lshlrev_b32 v{WF+c}, 16, v{SR+2*c}')
        A(f'v_and_b32 v{WF+4+c}, s{sHI}, v{SR+2*c}')
        A(f'v_lshlrev_b32 v{WF+8+c}, 16, v{SR+2*c+1}')
        A(f'v_and_b32 v{WF+12+c}, s{sHI}, v{SR+2*c+1}')
    for i in range(11):
        if i in (0, 4, 8):
            A.wait(vm=hK[min(i + 3, 10)])
        unpack(KF + 4 * i, KR + 2 * i)
        unpack(KF + 4 * i + 2, KR + 2 * i + 1)
        t = i - 3
        if t >= 0:
            for jt in (3, 2, 1, 0):
                for p in range(2):
                    d = v(KS + 4 * t + 2 * p, 2)
                    x = v(KF + 4 * (t + 3 - jt) + 2 * p, 2)
                    w = v(WF + 4 * jt + 2 * p, 2)
                    if jt == 3:
                        A(f'v_pk_mul_f32 {d}, {x}, {w}')
                    else:
                        A(f'v_pk_fma_f32 {d}, {x}, {w}, {d}')
    stamp(1)
    for t in range(8):
        if t in (0, 4):
            A.wait(vm=hV[t + 3])
        unpack(VF + 4 * t, VR + 2 * t)
        unpack(VF + 4 * t + 2, VR + 2 * t + 1)
        for p in range(2):
            A(f'v_pk_mul_f32 {v(KS+4*t+2*p,2)}, {v(KS+4*t+2*p,2)}, {v(VF+4*t+2*p,2)}')
    for c in range(4):
        for m in range(4):
            A(f'v_cvt_pk_bf16_f32 v{KO+4*c+m}, v{KS+4*(7-2*m)+c}, v{KS+4*(6-2*m)+c}')
        A.vm(f'buffer_store_dwordx4 {v(KO+4*c,4)}, v{vT}, {s(R_WS,4)}, {SOFF[c]} offen sc1')
    A('s_mov_b64 exec, -1')
    A.wait0(lg=True)
    A(f's_add_u32 s{sT}, s{sT}, 1')
    A(f's_and_b32 s{sTAG}, s{sT}, 0xffff')
    stamp(2)
    vFA, vFV = 8, 9
    A(f'''
    s_mul_i32 s{sA}, s{sX}, 3
    s_add_u32 s{sA}, s{sA}, s{sW}
    s_lshl_b32 s{sA}, s{sA}, 5
    s_add_u32 s{sA}, s{sA}, s{sJ}
    s_mul_i32 s{sA}, s{sA}, {FS1}
    s_add_u32 s{sA}, s{sA}, {W_FLAG1}
    v_mov_b32 v{vFA}, s{sA}
    v_mov_b32 v{vFV}, s{sT}
    s_cmp_eq_u32 s{sROLE}, 0
    s_cbranch_scc1 L_conv
    ''')

    def publish_flag():
        A.wait0(vm=True)
        A('s_mov_b64 exec, 1')
        A(f'buffer_store_dword v{vFV}, v{vFA}, {s(R_WS,4)}, 0 offen sc1')
        A('s_mov_b64 exec, -1')

    publish_flag()
    stamp(3)
    A('s_branch L_n1')

    A.label('L_loader')
    A(f's_cmp_lg_u32 s{sROLE}, 0')
    A('s_cbranch_scc1 L_loader_n')
    srd(R_G1, P_SK, 2621440)
    vK, vP0, vZ, vY, vD = 4, 5, 8, 6, 7
    A(f'''
    s_mul_i32 s{sA}, s{sX}, 20
    s_add_u32 s{sA}, s{sA}, s{sJ}
    s_lshl_b32 s{sB}, s{sA}, 14
    v_lshlrev_b32 v{vD}, 4, v{vL}
    v_add_u32 v{vK}, s{sB}, v{vD}
    v_add_u32 v{vP0}, -4, v{vK}
    v_bfrev_b32 v2, 1
    v_cmp_eq_u32 vcc, 0, v{vL}
    s_nop 1
    v_cndmask_b32 v{vP0}, v{vP0}, v2, vcc
    ''')
    A.vm_n = 0
    hk = []
    for cw in range(4):
        for i in range(4):
            idx = cw * 4 + i
            A.vm(f'buffer_load_dwordx4 {v(16+4*idx,4)}, v{vK}, {s(R_G1,4)}, {SOFF[cw]} offen offset:{1024*i}{NT}')
            if i == 0:
                hk.append(A.vm(f'buffer_load_dword v{80+idx}, v{vP0}, {s(R_G1,4)}, {SOFF[cw]} offen{NT}'))
            else:
                hk.append(A.vm(f'buffer_load_dword v{80+idx}, v{vK}, {s(R_G1,4)}, {SOFF[cw]} offen offset:{1024*i-4}{NT}'))
    A(f'''
    s_lshl_b32 s{sB}, s{sA}, 7
    s_add_u32 s{sB}, s{sB}, {W_Y}
    v_lshrrev_b32 v2, 3, v{vL}
    v_and_b32 v3, 7, v{vL}
    v_mul_u32_u24 v{vY}, 20480, v2
    v_lshl_add_u32 v{vY}, v3, 4, v{vY}
    v_add_u32 v{vY}, s{sB}, v{vY}
    v_mov_b32 v12, -1
    v_mov_b32 v13, -1
    v_mov_b32 v14, -1
    v_mov_b32 v15, -1
    s_mov_b32 s{sC}, 0
    ''')
    for i in range(16):
        A.vm(f'buffer_store_dwordx4 v[12:15], v{vY}, {s(R_WS,4)}, s{sC} offen sc1')
        A(f's_add_u32 s{sC}, s{sC}, 163840')
    A.wait0(lg=True)
    A(f's_add_u32 s{sT}, s{sT}, 1')
    A(f's_and_b32 s{sTAG}, s{sT}, 0xffff')
    for i in range(4):
        A(f'v_mov_b32 v{vZ+i}, 0')
    A(f'''
    v_lshrrev_b32 v2, 5, v{vL}
    v_and_b32 v3, 31, v{vL}
    v_mul_u32_u24 v2, {XBW}, v2
    v_lshl_add_u32 v2, v3, 4, v2
    ds_write_b128 v2, {v(vZ,4)} offset:{L_XB}
    ds_write_b128 v2, {v(vZ,4)} offset:{L_XB+2*XBW}
    v_bfe_u32 v2, v{vL}, 1, 3
    v_and_b32 v3, 1, v{vL}
    v_mul_u32_u24 v2, {KC1}, v2
    v_lshl_add_u32 v2, v3, 4, v2
    ds_write_b128 v2, {v(vZ,4)} offset:{L_KC}
    ''')
    for cw in range(4):
        for i in range(4):
            idx = cw * 4 + i
            d, t = 16 + 4 * idx, 96 + 4 * (idx & 3)
            A.wait(vm=hk[idx])
            A(f'ds_write_b128 v{vD}, {v(d,4)} offset:{L_KC+cw*KCW+32+1024*i}')
            A(f'v_alignbyte_b32 v{t}, v{d}, v{80+idx}, 2')
            for m in range(1, 4):
                A(f'v_alignbyte_b32 v{t+m}, v{d+m}, v{d+m-1}, 2')
            A(f'ds_write_b128 v{vD}, {v(t,4)} offset:{L_KC+cw*KCW+KC1+32+1024*i}')
    stamp(2)
    A(f'''
    s_mul_i32 s{sA}, s{sA}, {FSC}
    s_add_u32 s{sA}, s{sA}, {W_FLAGC}
    v_mov_b32 v{vFA}, s{sA}
    v_mov_b32 v{vFV}, s{sT}
    ''')
    A.wait0(lg=True)

    A.label('L_conv')
    vA0, vB, vAD, vYW, vYR, vYG = 10, 14, 16, 20, 21, 22
    A(f'''
    v_and_b32 v2, 15, v{vL}
    v_lshrrev_b32 v3, 4, v{vL}
    v_lshlrev_b32 v4, 3, v3
    v_sub_u32 v4, v2, v4
    v_add_u32 v4, 25, v4
    v_and_b32 v5, 1, v4
    v_mul_u32_u24 v5, {KC1+2}, v5
    v_lshl_add_u32 v5, v4, 1, v5
    s_mul_i32 s{sA}, s{sW}, {KCW}
    v_add_u32 v{vA0}, s{sA}, v5
    v_add_u32 v{vA0+1}, 1024, v{vA0}
    v_add_u32 v{vA0+2}, 2048, v{vA0}
    v_add_u32 v{vA0+3}, 3072, v{vA0}
    s_barrier
    ''')
    NPRE = opt.get('npre', 40)

    def afrag(q):
        o = 16 * (q & 15)
        A(f'ds_read2_b32 {a_(4*q,2)}, v{vA0+(q>>4)} offset0:{o} offset1:{o+1}')
        A(f'ds_read2_b32 {a_(4*q+2,2)}, v{vA0+(q>>4)} offset0:{o+2} offset1:{o+3}')
    for q in range(NPRE):
        afrag(q)
    publish_flag()
    stamp(3)
    for q in range(NPRE, 64):
        afrag(q)
    A(f'''
    v_sub_u32 v4, 16, v4
    s_bitcmp1_b32 s{sW}, 0
    s_cselect_b32 s{sA}, 16, 0
    s_lshr_b32 s{sSD}, s{sSD}, s{sA}
    s_and_b32 s{sSD}, s{sSD}, 0xffff
    v_and_b32 v5, 1, v4
    v_lshlrev_b32 v5, 4, v5
    v_lshlrev_b32 v5, v5, s{sSD}
    v_ashrrev_i32 v4, 1, v4
    ''')
    for m in range(4):
        A(f'v_cmp_eq_u32 vcc, {m}, v4')
        A.nop(2)
        A(f'v_cndmask_b32 v{vAD+m}, 0, v5, vcc')
    A(f'''
    s_mul_i32 s{sA}, s{sW}, {XBW}
    s_add_u32 s{sA}, s{sA}, {L_XB+32}
    v_lshlrev_b32 v{vB}, 5, v2
    v_lshl_add_u32 v{vB}, v3, 4, v{vB}
    v_add_u32 v{vB}, s{sA}, v{vB}
    s_add_u32 m0, s{sA}, 480
    s_lshl_b32 s{sA}, s{sW}, 10
    v_lshlrev_b32 v{vYW}, 5, v2
    v_lshl_add_u32 v{vYW}, v3, 3, v{vYW}
    v_add_u32 v{vYW}, s{sA}, v{vYW}
    v_lshlrev_b32 v{vYR}, 2, v0
    v_add_u32 v{vYR}, {L_YS}, v{vYR}
    s_mul_i32 s{sA}, s{sX}, 20
    s_add_u32 s{sA}, s{sA}, s{sJ}
    s_lshl_b32 s{sB}, s{sA}, 7
    s_add_u32 s{sB}, s{sB}, {W_Y}
    v_lshrrev_b32 v4, 3, v0
    v_and_b32 v5, 7, v0
    v_mul_u32_u24 v{vYG}, 20480, v4
    v_lshl_add_u32 v{vYG}, v5, 4, v{vYG}
    v_add_u32 v{vYG}, s{sB}, v{vYG}
    s_lshl_b32 s{sA}, s{sA}, 14
    s_lshl_b32 s{sB}, s{sW}, 12
    s_add_u32 s{sA}, s{sA}, s{sB}
    s_add_u32 s{sA}, s{sA}, {W_KVT}
    v_lshlrev_b32 v6, 4, v{vL}
    v_add_u32 v6, s{sA}, v6
    s_mul_i32 s{sA}, s{sX}, 3
    s_lshr_b32 s{sB}, s{sJ}, 3
    s_add_u32 s{sA}, s{sA}, s{sB}
    s_mul_i32 s{sA}, s{sA}, {32*FS1}
    s_add_u32 s{sA}, s{sA}, {W_FLAG1}
    v_and_b32 v7, 31, v{vL}
    v_mul_u32_u24 v7, {FS1}, v7
    v_add_u32 v7, s{sA}, v7
    ''')
    stamp(4)
    lab = spin_begin('kv')
    A(f'buffer_load_dword v4, v7, {s(R_WS,4)}, 0 offen sc1')
    A.wait0(vm=True)
    A(f'v_cmp_ne_u32 vcc, s{sT}, v4')
    spin_end(lab)
    stamp(5)
    A.vm_n = 0
    hx = [A.vm(f'buffer_load_dwordx4 v6, {s(R_WS,4)}, 0 offen offset:{1024*i} sc1 lds') for i in range(4)]
    A.wait0(lg=True)
    A.lg_n = 0

    BR, ACC, YP, YQ, YO = 32, 96, 112, 120, 124
    steps = []
    for p in range(4):
        t0, t1 = 2 * p, 2 * p + 1
        for b in range(t1 + 1):
            for r in range(8):
                mf = []
                if b <= t0:
                    mf.append((0, 8 * (t0 - b) + r))
                mf.append((1, 8 * (t1 - b) + r))
                if r == 0 and b == t0:
                    mf.append((0, -1))
                if r == 0 and b == t1:
                    mf.append((1, -1))
                steps.append(dict(p=p, b=b, r=r, w=8 * b - r, mf=mf))
    nst = len(steps)
    ev = {}
    pend = {}
    for p in range(4):
        last = max(i for i, st in enumerate(steps) if st['p'] == p)
        ev.setdefault(last - 8 + 6, []).append(('cvt', p, 0))
        ev.setdefault(last + 3, []).append(('cvt', p, 1))
        ev.setdefault(last + 7, []).append(('bar', p))
        ev.setdefault(last + 11, []).append(('st', p))
    hB = {}
    landed = [-1]

    def bread(i):
        st = steps[i]
        blk = st['b'] >> 1
        if blk > landed[0]:
            A.wait(vm=hx[blk])
            landed[0] = blk
        hB[i] = A.lg(f'ds_read_b128 {v(BR+4*(i%NB),4)}, v{vB} offset:{64*(st["w"]+7)}')

    def event(e):
        p = e[1]
        if e[0] == 'cvt':
            acc = ACC + 8 * (p & 1) + 4 * e[2]
            d = YP + 2 * e[2]
            A(f'v_cvt_pk_bf16_f32 v{d}, v{acc}, v{acc+1}')
            A(f'v_cvt_pk_bf16_f32 v{d+1}, v{acc+2}, v{acc+3}')
            pend[p] = A.lg(f'ds_write_b64 v{vYW}, {v(d,2)} offset:{L_YS+4096*p+512*e[2]}')
        elif e[0] == 'bar':
            A.wait(lg=pend[p])
            A('s_barrier')
            A.lg(f'ds_read2st64_b32 {v(YQ,2)}, v{vYR} offset0:{16*p} offset1:{16*p+4}')
            pend[p] = A.lg(f'ds_read2st64_b32 {v(YQ+2,2)}, v{vYR} offset0:{16*p+8} offset1:{16*p+12}')
        else:
            A.wait(lg=pend[p])
            A(f'v_perm_b32 v{YO}, v{YQ+1}, v{YQ}, s{sPLO}')
            A(f'v_perm_b32 v{YO+1}, v{YQ+3}, v{YQ+2}, s{sPLO}')
            A(f'v_perm_b32 v{YO+2}, v{YQ+1}, v{YQ}, s{sPHI}')
            A(f'v_perm_b32 v{YO+3}, v{YQ+3}, v{YQ+2}, s{sPHI}')
            A(f's_mov_b32 s{sA}, {655360*p}')
            A.vm(f'buffer_store_dwordx4 {v(YO,4)}, v{vYG}, {s(R_WS,4)}, s{sA} offen sc1')

    for i in range(PD):
        bread(i)
    started = set()
    for i, st in enumerate(steps):
        if i + PD < nst:
            bread(i + PD)
        A.wait(lg=hB[i])
        for (k, q) in st['mf']:
            acc = v(ACC + 8 * (st['p'] & 1) + 4 * k, 4)
            src = v(vAD, 4) if q < 0 else a_(4 * q, 4)
            c = acc if (st['p'], k) in started else '0'
            started.add((st['p'], k))
            A(f'v_mfma_f32_16x16x32_bf16 {acc}, {src}, {v(BR+4*(i%NB),4)}, {c}')
        for e in ev.pop(i, []):
            event(e)
    A.nop(8)
    for i in sorted(ev):
        for e in ev[i]:
            event(e)
    stamp(6)
    A('s_branch L_ln')

    A.label('L_loader_n')
    A.wait0(lg=True)
    A(f's_add_u32 s{sT}, s{sT}, 1')
    A(f's_and_b32 s{sTAG}, s{sT}, 0xffff')
    A(f's_cmp_ge_u32 s{sMI}, 60')
    A('s_cbranch_scc1 L_loader_nomod')
    srd(R_G1, P_C, 1280)
    srd(R_G2, P_WM, 4915200)
    A(f'''
    v_lshlrev_b32 v4, 3, v{vL}
    v_and_b32 v5, 31, v{vL}
    v_lshlrev_b32 v6, 3, v5
    buffer_load_dwordx2 v[16:17], v4, {s(R_G1,4)}, 0 offen
    buffer_load_dwordx2 v[18:19], v4, {s(R_G1,4)}, 0 offen offset:512
    buffer_load_dwordx2 v[20:21], v6, {s(R_G1,4)}, 0 offen offset:1024
    v_lshrrev_b32 v2, 3, v{vL}
    v_and_b32 v3, 6, v2
    v_xor_b32 v3, v3, v{vL}
    v_and_b32 v3, 7, v3
    v_mul_u32_u24 v7, 7680, v2
    v_lshl_add_u32 v7, v3, 4, v7
    s_lshl_b32 s{sA}, s{sMI}, 7
    v_add_u32 v7, s{sA}, v7
    ''')
    A.wait0(vm=True)
    dma_loop(7, R_G2, 80, 61440, L_WB1)
    for i in range(6):
        unpack(24 + 2 * i, 16 + i)
    for i in range(12):
        A(f'v_mul_f32 v{40+i}, 0xbfb8aa3b, v{24+i}')
    for i in range(12):
        A(f'v_exp_f32 v{40+i}, v{40+i}')
    for i in range(12):
        A(f'v_add_f32 v{40+i}, 1.0, v{40+i}')
    for i in range(12):
        A(f'v_rcp_f32 v{40+i}, v{40+i}')
    for i in range(12):
        A(f'v_mul_f32 v{24+i}, v{24+i}, v{40+i}')
    for i in range(6):
        A(f'v_cvt_pk_bf16_f32 v{16+i}, v{24+2*i}, v{25+2*i}')
    quadpos(4, vL, 2)
    A(f'v_add_u32 v4, {L_XA}, v4')
    quadpos(6, 5, 2)
    A(f'v_add_u32 v6, {L_XA}, v6')
    A(f'''
    ds_write_b64 v4, v[16:17]
    ds_write_b64 v4, v[18:19] offset:512
    ds_write_b64 v6, v[20:21] offset:1024
    s_cmp_eq_u32 s{sROLE}, 2
    s_cbranch_scc1 L_loader_f2
    ''')
    A.wait0(vm=True, lg=True)
    A('s_branch L_n1')
    A.label('L_loader_f2')
    srd(R_G1, P_WD, 2211840)
    A(f'''
    v_lshrrev_b32 v2, 1, v{vL}
    v_and_b32 v3, 1, v{vL}
    v_mul_u32_u24 v7, 1280, v2
    v_lshl_add_u32 v7, v3, 4, v7
    s_lshl_b32 s{sA}, s{sF}, 5
    v_add_u32 v7, s{sA}, v7
    v_mov_b32 v12, 0
    v_mov_b32 v13, 0
    v_mov_b32 v14, 0
    v_mov_b32 v15, 0
    v_lshlrev_b32 v2, 4, v{vL}
    v_add_u32 v2, {L_WB2+54*1024}, v2
    ds_write_b128 v2, v[12:15]
    ds_write_b128 v2, v[12:15] offset:1024
    ''')
    dma_loop(7, R_G1, 54, 40960, L_WB2)
    A('s_waitcnt vmcnt(54) lgkmcnt(0)')
    A('s_branch L_n1')

    def f1_addr():
        srd(R_G1, P_WG, 2211840)
        srd(R_G2, P_WU, 2211840)
        A(f'''
        v_lshrrev_b32 v2, 2, v{vL}
        v_bfe_u32 v3, v{vL}, 4, 1
        v_xor_b32 v3, v3, v{vL}
        v_and_b32 v3, 3, v3
        v_mul_u32_u24 v6, 3456, v2
        s_lshl_b32 s{sA}, s{sF}, 6
        v_add_u32 v6, s{sA}, v6
        v_xor_b32 v2, 2, v3
        v_lshl_add_u32 v7, v2, 4, v6
        v_lshl_add_u32 v6, v3, 4, v6
        ''')

    A.label('L_loader_nomod')
    A(f's_cmp_lg_u32 s{sROLE}, 1')
    A('s_cbranch_scc1 L_n1')
    f1_addr()
    dma_loop(6, R_G1, 40, 55296, L_WB1)
    dma_loop(7, R_G2, 40, 55296, L_WB1 + 40960)

    A.label('L_n1')
    vKH, vRS, vCC, vAV = 10, 11, 12, 13
    A(f'''
    v_lshrrev_b32 v{vKH}, 4, v{vL}
    v_bfe_u32 v{vRS}, v{vL}, 2, 3
    v_and_b32 v{vCC}, 3, v{vL}
    v_lshrrev_b32 v2, 5, v{vL}
    v_lshl_add_u32 v14, v2, 4, v{vRS}
    s_barrier
    s_cmp_ge_u32 s{sMI}, 60
    s_cbranch_scc1 L_n3
    ''')
    stamp(4)
    A(f'''
    v_lshrrev_b32 v2, 1, v{vRS}
    v_xor_b32 v2, s{sW}, v2
    v_lshlrev_b32 v4, 7, v14
    v_lshl_add_u32 v4, v2, 5, v4
    v_lshl_add_u32 v4, v{vCC}, 3, v4
    v_add_u32 v5, 40960, v4
    v_lshlrev_b32 v{vAV}, 4, v{vKH}
    v_add_u32 v{vAV}, {L_XA}, v{vAV}
    ''')
    A.lg_n = 0
    hq = []
    for q in range(20):
        base, o = (4, q * 4096) if q < 10 else (5, (q - 10) * 4096)
        A.lg(f'ds_read_b128 {v(16+4*q,4)}, v{vAV} offset:{64*q}')
        A.lg(f'ds_read_b64_tr_b16 {v(96+4*q,2)}, v{base} offset:{o}')
        hq.append(A.lg(f'ds_read_b64_tr_b16 {v(98+4*q,2)}, v{base} offset:{o+1024}'))
        if q >= 4:
            A.wait(lg=hq[q - 4])
            A(f'v_mfma_f32_16x16x32_bf16 v[180:183], {v(16+4*(q-4),4)}, {v(96+4*(q-4),4)}, {"0" if q == 4 else "v[180:183]"}')
    for q in range(16, 20):
        A.wait(lg=hq[q])
        A(f'v_mfma_f32_16x16x32_bf16 v[180:183], {v(16+4*q,4)}, {v(96+4*q,4)}, v[180:183]')
    A(f'''
    s_barrier
    s_lshl_b32 s{sA}, s{sMI}, 8
    s_lshl_b32 s{sB}, s{sW}, 6
    s_add_u32 s{sA}, s{sA}, s{sB}
    s_add_u32 s{sA}, s{sA}, {W_MOD}
    v_lshlrev_b32 v2, 2, v{vL}
    v_add_u32 v2, s{sA}, v2
    v_mov_b32 v3, s{sTAG}
    s_nop 0
    v_cvt_pk_bf16_f32 v4, v180, v180
    v_and_or_b32 v4, v4, s{sHI}, v3
    s_mov_b64 exec, 0xffff
    buffer_store_dword v4, v2, {s(R_WS,4)}, 0 offen sc1
    s_mov_b64 exec, -1
    ''')
    stamp(5)
    A(f's_cmp_lg_u32 s{sROLE}, 1')
    A('s_cbranch_scc1 L_n3')
    f1_addr()
    A(f's_mul_i32 s{sC}, s{sW}, 10240')
    A(f's_mul_i32 s{sD_}, s{sW}, 552960')
    dma_loop(6, R_G1, 10, 55296, s(sC), s(sD_))
    A(f's_add_u32 s{sC}, s{sC}, 40960')
    dma_loop(7, R_G2, 10, 55296, s(sC), s(sD_))
    A.label('L_n3')
    A.wait0(vm=True)
    A('s_barrier')
    A(f's_cmp_eq_u32 s{sROLE}, 2')
    A('s_cbranch_scc1 L_n3_f2')
    A(f'''
    v_lshrrev_b32 v2, 1, v{vCC}
    v_and_b32 v3, 2, v{vCC}
    v_and_b32 v4, 1, v{vKH}
    v_xor_b32 v3, v3, v4
    v_xor_b32 v3, s{sW}, v3
    v_mul_u32_u24 v4, 40960, v2
    v_lshl_add_u32 v4, v14, 6, v4
    v_lshl_add_u32 v4, v3, 4, v4
    v_and_b32 v2, 1, v{vCC}
    v_lshl_add_u32 v4, v2, 3, v4
    ''')
    for q in range(20):
        A(f'ds_read_b64_tr_b16 {a_(4*q,2)}, v4 offset:{2048*q}')
        A(f'ds_read_b64_tr_b16 {a_(4*q+2,2)}, v4 offset:{2048*q+512}')
    A('s_branch L_n4')
    A.label('L_n3_f2')
    A(f'''
    s_mul_i32 s{sA}, s{sW}, {448*32}
    s_add_u32 s{sA}, s{sA}, {L_WB2}
    v_lshlrev_b32 v4, 5, v14
    v_lshl_add_u32 v4, v{vCC}, 3, v4
    v_add_u32 v4, s{sA}, v4
    ''')
    for q in range(14):
        A(f'ds_read_b64_tr_b16 {a_(4*q,2)}, v4 offset:{1024*q}')
        A(f'ds_read_b64_tr_b16 {a_(4*q+2,2)}, v4 offset:{1024*q+256}')
    A.label('L_n4')
    A.wait0(lg=True)
    stamp(6)

    A.label('L_ln')
    QR, WRR, YR, MR, FC = 16, 26, 36, 46, 62
    QF, GH, CW, C1, SB, GB, T0, T1, T2 = 64, 84, 104, 124, 144, 164, 184, 204, 224
    vQ, vYA, vMG, vML, vMR, vFC, vTAU, vHL = 4, 5, 6, 7, 8, 9, 10, 11
    X0 = 244
    A(f'''
    v_and_b32 v{vHL}, 31, v{vL}
    v_lshrrev_b32 v{vTAU}, 5, v0
    s_lshr_b32 s{sA}, s{sJ}, 1
    s_lshl_b32 s{sA}, s{sA}, 3
    s_add_u32 s{sA}, s{sA}, s{sX}
    s_and_b32 s{sB}, s{sJ}, 1
    s_lshl_b32 s{sB}, s{sB}, 3
    s_mul_i32 s{sA}, s{sA}, 20480
    v_add_u32 v2, s{sB}, v{vTAU}
    v_mul_u32_u24 v{vQ}, 1280, v2
    v_lshlrev_b32 v3, 3, v{vHL}
    v_add3_u32 v{vQ}, v{vQ}, v3, s{sA}
    s_add_u32 s{sA}, s{sA}, {W_Y}
    v_lshlrev_b32 v{vYA}, 7, v{vHL}
    v_lshl_add_u32 v{vYA}, v2, 3, v{vYA}
    v_add_u32 v{vYA}, s{sA}, v{vYA}
    ''')
    A.vm_n = 0
    for i in range(5):
        hQ = A.vm(f'buffer_load_dwordx2 {v(QR+2*i,2)}, v{vQ}, {s(R_Q,4)}, 0 offen offset:{256*i}{NT}')
    for i in range(5):
        hW = A.vm(f'buffer_load_dwordx2 {v(WRR+2*i,2)}, v3, {s(R_WR,4)}, 0 offen offset:{256*i}')
    A(f'''
    v_min_u32 v2, 59, v{vL}
    s_mul_i32 s{sA}, s{sW}, 3840
    v_lshlrev_b32 v2, 4, v2
    v_add_u32 v2, s{sA}, v2
    v_add_u32 v{vMG}, {W_MOD}, v2
    v_add_u32 v{vML}, {L_MOD}, v2
    v_lshlrev_b32 v{vMR}, 4, v{vHL}
    v_add_u32 v{vMR}, {L_MOD}, v{vMR}
    v_min_u32 v2, 159, v0
    v_mul_u32_u24 v{vFC}, {FSC}, v2
    v_add_u32 v{vFC}, {W_FLAGC}, v{vFC}
    ''')
    lab = spin_begin('mod')
    for i in range(4):
        A(f'buffer_load_dwordx4 {v(MR+4*i,4)}, v{vMG}, {s(R_WS,4)}, 0 offen offset:{960*i} sc1')
    A(f'buffer_load_dword v{FC}, v{vFC}, {s(R_WS,4)}, 0 offen sc1')
    A.wait0(vm=True)
    A(f'v_xor_b32 v2, s{sTAG}, v{MR}')
    for i in range(1, 16):
        A(f'v_bitop3_b32 v2, v2, v{MR+i}, s{sTAG} bitop3:0xf6')
    A(f'v_and_b32 v2, 0xffff, v2')
    A(f'v_bitop3_b32 v2, v2, v{FC}, s{sT} bitop3:0xf6')
    A(f'v_cmp_ne_u32 vcc, 0, v2')
    spin_end(lab)
    stamp(7)
    for i in range(16):
        A(f'v_and_b32 v{MR+i}, s{sHI}, v{MR+i}')
    for i in range(4):
        A(f'ds_write_b128 v{vML}, {v(MR+4*i,4)} offset:{960*i}')
    for i in range(10):
        unpack(QF + 2 * i, QR + i)
    sum20(X0, QF, T0)
    red32([X0], X0 + 2)
    A(f'v_mul_f32 v{X0}, {hexf(1/640)}, v{X0}')
    A.wait0(lg=True)
    A('s_barrier')
    A.lg_n = 0
    hm = {}
    for seg, dst in ((1, T1), (0, T0), (2, T2), (4, C1), (3, SB), (5, GB)):
        for i in range(5):
            hm[seg] = A.lg(f'ds_read_b128 {v(dst+4*i,4)}, v{vMR} offset:{2560*seg+512*i}')
    for i in range(10):
        A(f'v_pk_add_f32 {v(GH+2*i,2)}, {v(QF+2*i,2)}, {v(X0,2)} op_sel_hi:[1,0] neg_lo:[0,1] neg_hi:[0,1]')
    dots20([(X0 + 2, GH, GH, X0 + 4)])
    red32([X0 + 2], X0 + 4)
    A(f'v_mov_b32 v{X0+4}, {hexf(1e-5)}')
    A(f'v_fmac_f32 v{X0+4}, {hexf(1/640)}, v{X0+2}')
    A(f'v_rsq_f32 v{X0+2}, v{X0+4}')
    for i in range(10):
        unpack(CW + 2 * i, WRR + i)
    A.wait0(lg=True)
    for i in range(10):
        A(f'v_pk_fma_f32 {v(T1+2*i,2)}, {v(T1+2*i,2)}, {v(X0+2,2)}, {v(X0+2,2)} op_sel_hi:[1,0,0]')
    for i in range(10):
        A(f'v_pk_fma_f32 {v(GH+2*i,2)}, {v(GH+2*i,2)}, {v(T1+2*i,2)}, {v(T0+2*i,2)}')
    for i in range(10):
        A(f'v_pk_mul_f32 {v(GH+2*i,2)}, {v(GH+2*i,2)}, {v(T2+2*i,2)}')
    vC2 = X0 + 8
    dots20([(vC2, SB, CW, X0 + 4)])
    for i in range(10):
        A(f'v_pk_add_f32 {v(C1+2*i,2)}, {v(C1+2*i,2)}, 1.0 op_sel_hi:[1,0]')
    for i in range(10):
        A(f'v_pk_mul_f32 {v(CW+2*i,2)}, {v(CW+2*i,2)}, {v(C1+2*i,2)}')
    red32([vC2], X0 + 4)
    vSC, vID = 12, 13
    A(f'''
    v_lshlrev_b32 v{vSC}, 2, v{vTAU}
    v_add_u32 v{vSC}, {L_SCR}, v{vSC}
    s_lshl_b32 s{sA}, s2, 3
    v_add_u32 v{vID}, s{sA}, v{vTAU}
    v_mov_b32 v14, {L_SCR}
    s_add_u32 s{sA}, s{sA}, {W_KEYS}
    v_mov_b32 v15, s{sA}
    ''')
    stamp(8)
    lab = spin_begin('y')
    for i in range(5):
        A(f'buffer_load_dwordx2 {v(YR+2*i,2)}, v{vYA}, {s(R_WS,4)}, {SOFF[i]} offen sc1')
    A.wait0(vm=True)
    A(f'v_max3_u32 v2, v{YR}, v{YR+1}, v{YR+2}')
    A(f'v_max3_u32 v3, v{YR+3}, v{YR+4}, v{YR+5}')
    A(f'v_max3_u32 v2, v2, v{YR+6}, v{YR+7}')
    A(f'v_max3_u32 v3, v3, v{YR+8}, v{YR+9}')
    A(f'v_max_u32 v2, v2, v3')
    A(f'v_cmp_eq_u32 vcc, -1, v2')
    spin_end(lab)
    stamp(9)
    X1, XC, H2 = T0, T1, T2
    for i in range(10):
        unpack(X1 + 2 * i, YR + i)
    for i in range(10):
        A(f'v_pk_fma_f32 {v(X1+2*i,2)}, {v(X1+2*i,2)}, {v(GH+2*i,2)}, {v(QF+2*i,2)}')
    sum20(X0, X1, H2)
    red32([X0], X0 + 2)
    A(f'v_mul_f32 v{X0}, {hexf(1/640)}, v{X0}')
    for i in range(10):
        A(f'v_pk_add_f32 {v(XC+2*i,2)}, {v(X1+2*i,2)}, {v(X0,2)} op_sel_hi:[1,0] neg_lo:[0,1] neg_hi:[0,1]')
    dots20([(X0 + 2, XC, XC, X0 + 4), (X0 + 3, XC, CW, X0 + 6)])
    red32([X0 + 2, X0 + 3], X0 + 4)
    A(f'''
    v_mov_b32 v{X0+4}, {hexf(1e-5)}
    v_fmac_f32 v{X0+4}, {hexf(1/640)}, v{X0+2}
    v_rsq_f32 v{X0+2}, v{X0+4}
    s_movk_i32 s{sA}, 0xf800
    v_fma_f32 v{X0+3}, v{X0+3}, v{X0+2}, v{vC2}
    v_ashrrev_i32 v2, 31, v{X0+3}
    v_or_b32 v2, 0x80000000, v2
    v_xor_b32 v2, v2, v{X0+3}
    v_and_or_b32 v{vID}, v2, s{sA}, v{vID}
    ds_write_b32 v{vSC}, v{vID}
    ''')
    for i in range(10):
        A(f'v_pk_mul_f32 {v(C1+2*i,2)}, {v(C1+2*i,2)}, {v(X0+2,2)} op_sel_hi:[1,0]')
    A.wait0(lg=True)
    A('s_barrier')
    A('ds_read_b128 v[16:19], v14')
    A('ds_read_b128 v[20:23], v14 offset:16')
    for i in range(10):
        A(f'v_pk_fma_f32 {v(H2+2*i,2)}, {v(XC+2*i,2)}, {v(C1+2*i,2)}, {v(SB+2*i,2)}')
    A(f'v_mov_b32 v3, s{sT}')
    A.wait0(lg=True)
    A(f'''
    v_max3_u32 v2, v16, v17, v18
    v_max3_u32 v19, v19, v20, v21
    v_max3_u32 v2, v2, v22, v23
    v_max_u32 v2, v2, v19
    s_cmp_lg_u32 s{sW}, 0
    s_cbranch_scc1 L_nokey
    s_mov_b64 exec, 1
    buffer_store_dwordx2 v[2:3], v15, {s(R_WS,4)}, 0 offen sc1
    s_mov_b64 exec, -1
    ''')
    A.label('L_nokey')
    stamp(10)
    vRO = 12
    A(f'''
    v_cmp_eq_u32 s[{sC+1}:{sC+2}], v2, v{vID}
    s_mul_i32 s{sA}, s2, 2560
    v_lshlrev_b32 v{vRO}, 4, v{vHL}
    v_add_u32 v{vRO}, s{sA}, v{vRO}
    v_mov_b32 v3, s{sTAG}
    s_cmp_eq_u64 s[{sC+1}:{sC+2}], 0
    s_cbranch_scc1 L_norow
    s_mov_b64 exec, s[{sC+1}:{sC+2}]
    s_mov_b32 s{sA}, {W_ROWS}
    ''')
    for i in range(5):
        for k in range(2):
            A(f'v_cvt_pk_bf16_f32 v2, v{H2+4*i+2*k}, v{H2+4*i+2*k+1}')
            A(f'v_lshl_or_b32 v{16+4*i+2*k}, v2, 16, v3')
            A(f'v_and_or_b32 v{17+4*i+2*k}, v2, s{sHI}, v3')
        A(f'buffer_store_dwordx4 {v(16+4*i,4)}, v{vRO}, {s(R_WS,4)}, s{sA} offen offset:{512*i} sc1')
    A('s_mov_b64 exec, -1')
    A.label('L_norow')
    for i in range(10):
        A(f'v_pk_fma_f32 {v(X1+2*i,2)}, {v(GB+2*i,2)}, {v(H2+2*i,2)}, {v(X1+2*i,2)}')
    for i in range(5):
        A(f'v_cvt_pk_bf16_f32 v{40+2*i}, v{X1+4*i}, v{X1+4*i+1}')
        A(f'v_cvt_pk_bf16_f32 v{41+2*i}, v{X1+4*i+2}, v{X1+4*i+3}')
        A(f'buffer_store_dwordx2 {v(40+2*i,2)}, v{vQ}, {s(R_OUT,4)}, 0 offen offset:{256*i} sc1')
    A(f'''
    s_cmp_eq_u64 s[{sC+1}:{sC+2}], 0
    s_cbranch_scc1 L_nobase
    s_mov_b64 exec, s[{sC+1}:{sC+2}]
    s_movk_i32 s{sB}, 0xff
    s_mov_b32 s{sA}, {W_BASE}
    ''')
    for i in range(20):
        A(f'v_bfi_b32 v{X1+i}, s{sB}, v3, v{X1+i}')
    A.wait0(vm=True)
    for i in range(5):
        A(f'buffer_store_dwordx4 {v(X1+4*i,4)}, v{vRO}, {s(R_WS,4)}, s{sA} offen offset:{512*i} sc1')
    A('s_mov_b64 exec, -1')
    A.label('L_nobase')
    stamp(11)
    A(f'''
    s_sub_u32 s{sA}, s{sROLE}, 1
    s_cmp_ge_u32 s{sA}, 2
    s_cbranch_scc1 L_fin
    ''')

    vXW, vXR = 6, 7
    A(f'''
    v_lshlrev_b32 v4, 4, v{vL}
    s_mov_b32 s{sB}, {W_KEYS}
    s_mul_i32 s{sA}, s{sW}, {XAW}
    s_add_u32 s{sA}, s{sA}, {L_XA}
    v_lshrrev_b32 v{vXR}, 4, v{vL}
    v_lshlrev_b32 v{vXR}, 4, v{vXR}
    v_add_u32 v{vXR}, s{sA}, v{vXR}
    ''')
    quadpos(vXW, vL, 2)
    A(f'v_and_b32 v8, 255, v{vXW}')
    A(f'v_add_u32 v{vXW}, s{sA}, v{vXW}')
    A(f'v_add_u32 v8, s{sA}, v8')
    lab = spin_begin('key')
    A(f'buffer_load_dwordx4 v[16:19], v4, {s(R_WS,4)}, s{sB} offen sc1')
    A(f'buffer_load_dwordx4 v[20:23], v4, {s(R_WS,4)}, s{sB} offen offset:1024 sc1')
    A.wait0(vm=True)
    A(f'''
    v_xor_b32 v2, s{sT}, v17
    v_bitop3_b32 v2, v2, v19, s{sT} bitop3:0xf6
    v_bitop3_b32 v2, v2, v21, s{sT} bitop3:0xf6
    v_bitop3_b32 v2, v2, v23, s{sT} bitop3:0xf6
    v_max3_u32 v3, v16, v18, v20
    v_cmp_ne_u32 vcc, 0, v2
    v_max_u32 v3, v3, v22
    ''')
    spin_end(lab)
    for sh in (8, 4, 2, 1):
        A.nop(2)
        A(f'v_max_u32_dpp v3, v3, v3 row_ror:{sh} row_mask:0xf bank_mask:0xf')
    A(f'''
    s_nop 0
    v_readlane_b32 s{sKEY}, v3, 0
    v_readlane_b32 s{sA}, v3, 16
    v_readlane_b32 s{sB}, v3, 32
    v_readlane_b32 s{sC}, v3, 48
    s_max_u32 s{sKEY}, s{sKEY}, s{sA}
    s_max_u32 s{sB}, s{sB}, s{sC}
    s_max_u32 s{sKEY}, s{sKEY}, s{sB}
    s_bfe_u32 s{sSLOT}, s{sKEY}, 0x80003
    s_mul_i32 s{sE}, s{sSLOT}, 2560
    ''')
    stamp(12)
    A(f's_cmp_eq_u32 s{sROLE}, 2')
    A('s_cbranch_scc1 L_f2')

    A(f'''
    s_add_u32 s{sE}, s{sE}, {W_ROWS}
    v_and_b32 v5, 511, v4
    ''')
    lab = spin_begin('row')
    A(f'buffer_load_dwordx4 v[16:19], v4, {s(R_WS,4)}, s{sE} offen sc1')
    A(f'buffer_load_dwordx4 v[20:23], v4, {s(R_WS,4)}, s{sE} offen offset:1024 sc1')
    A(f'buffer_load_dwordx4 v[24:27], v5, {s(R_WS,4)}, s{sE} offen offset:2048 sc1')
    A.wait0(vm=True)
    for i in range(3):
        A(f'v_perm_b32 v{28+2*i}, v{17+4*i}, v{16+4*i}, s{sPHI}')
        A(f'v_perm_b32 v{29+2*i}, v{19+4*i}, v{18+4*i}, s{sPHI}')
        A(f'ds_write_b64 v{vXW if i < 2 else 8}, {v(28+2*i,2)} offset:{512*i}')
    A(f'v_xor_b32 v2, s{sTAG}, v16')
    for r in (19, 20, 23, 24, 27):
        A(f'v_bitop3_b32 v2, v2, v{r}, s{sTAG} bitop3:0xf6')
    A('v_and_b32 v2, 0xffff, v2')
    A('v_cmp_ne_u32 vcc, 0, v2')
    spin_end(lab)

    def gemv(n):
        A.wait0(lg=True)
        A.lg_n = 0
        h = []
        for q in range(n):
            h.append(A.lg(f'ds_read_b128 {v(64+4*q,4)}, v{vXR} offset:{64*q}'))
            if q >= 8:
                A.wait(lg=h[q - 8])
                A(f'v_mfma_f32_16x16x32_bf16 v[40:43], {v(64+4*(q-8),4)}, {a_(4*(q-8),4)}, {"0" if q == 8 else "v[40:43]"}')
        for q in range(n - 8, n):
            A.wait(lg=h[q])
            A(f'v_mfma_f32_16x16x32_bf16 v[40:43], {v(64+4*q,4)}, {a_(4*q,4)}, v[40:43]')

    stamp(13)
    gemv(20)
    A(f'''
    s_lshl_b32 s{sA}, s{sF}, 7
    s_lshl_b32 s{sB}, s{sW}, 5
    s_add_u32 s{sA}, s{sA}, s{sB}
    s_add_u32 s{sA}, s{sA}, {W_HID}
    v_lshlrev_b32 v2, 2, v{vL}
    v_mov_b32 v3, s{sTAG}
    s_nop 1
    v_mul_f32 v44, 0xbfb8aa3b, v40
    v_exp_f32 v44, v44
    v_mul_f32_dpp v45, v41, v40 row_ror:8 row_mask:0xf bank_mask:0xf
    v_add_f32 v44, 1.0, v44
    v_rcp_f32 v44, v44
    s_mov_b64 exec, 0xff
    v_mul_f32 v44, v44, v45
    v_cvt_pk_bf16_f32 v44, v44, v44
    v_and_or_b32 v44, v44, s{sHI}, v3
    buffer_store_dword v44, v2, {s(R_WS,4)}, s{sA} offen sc1
    s_mov_b64 exec, -1
    ''')
    stamp(14)
    A('s_branch L_fin')

    A.label('L_f2')
    A(f'''
    s_lshl_b32 s{sA}, s{sF}, 6
    s_add_u32 s{sE}, s{sE}, s{sA}
    s_add_u32 s{sE}, s{sE}, {W_BASE}
    v_and_b32 v9, 15, v{vL}
    v_lshlrev_b32 v10, 2, v9
    s_add_u32 s{sA}, s{sA}, {L_MOD+5*2560}
    v_add_u32 v2, s{sA}, v10
    ds_read_b32 v50, v2
    s_mul_i32 s{sD_}, s{sW}, 1792
    s_add_u32 s{sD_}, s{sD_}, {W_HID}
    s_cmp_eq_u32 s{sW}, 3
    s_cselect_b32 s{sA}, 31, 47
    v_min_u32 v5, s{sA}, v{vL}
    v_lshlrev_b32 v5, 4, v5
    s_or_b32 s{sA}, s{sF}, s{sW}
    s_cmp_lg_u32 s{sA}, 0
    s_cbranch_scc1 L_noepoch
    v_mov_b32 v2, {W_EPOCH}
    v_mov_b32 v3, s{sT}
    s_mov_b64 exec, 1
    buffer_store_dword v3, v2, {s(R_WS,4)}, 0 offen sc1
    s_mov_b64 exec, -1
    ''')
    A.label('L_noepoch')
    A(f'''
    s_ashr_i32 s{sA}, s{sKEY}, 31
    s_not_b32 s{sA}, s{sA}
    s_or_b32 s{sA}, s{sA}, 0x80000000
    s_xor_b32 s{sA}, s{sA}, s{sKEY}
    v_mov_b32 v51, 0xbfb8aa3b
    v_mul_f32 v51, s{sA}, v51
    v_exp_f32 v51, v51
    s_lshr_b32 s{sA}, s{sSLOT}, 4
    v_add_f32 v51, 1.0, v51
    v_rcp_f32 v51, v51
    s_lshl_b32 s{sA}, s{sA}, 3
    s_and_b32 s{sB}, s{sSLOT}, 7
    s_add_u32 s{sA}, s{sA}, s{sB}
    s_lshl_b32 s{sA}, s{sA}, 4
    s_and_b32 s{sB}, s{sSLOT}, 8
    s_add_u32 s{sA}, s{sA}, s{sB}
    s_and_b32 s{sB}, s{sKEY}, 7
    s_add_u32 s{sA}, s{sA}, s{sB}
    s_mul_i32 s{sA}, s{sA}, 1280
    s_lshl_b32 s{sB}, s{sF}, 5
    s_add_u32 s{sSLOT}, s{sA}, s{sB}
    v_lshlrev_b32 v11, 1, v9
    s_lshl_b32 s{sA}, s{sW}, 6
    s_add_u32 s{sA}, s{sA}, {L_SCR+64}
    v_add_u32 v12, s{sA}, v10
    v_add_u32 v13, {L_SCR+64}, v10
    ''')
    A.wait0(lg=True)
    A('v_mul_f32 v51, v51, v50')
    lab = spin_begin('hid')
    A(f'buffer_load_dword v52, v10, {s(R_WS,4)}, s{sE} offen sc1')
    A(f'buffer_load_dwordx4 v[16:19], v4, {s(R_WS,4)}, s{sD_} offen sc1')
    A(f'buffer_load_dwordx4 v[20:23], v5, {s(R_WS,4)}, s{sD_} offen offset:1024 sc1')
    A.wait0(vm=True)
    for i in range(2):
        A(f'v_perm_b32 v{28+2*i}, v{17+4*i}, v{16+4*i}, s{sPHI}')
        A(f'v_perm_b32 v{29+2*i}, v{19+4*i}, v{18+4*i}, s{sPHI}')
        A(f'ds_write_b64 v{vXW}, {v(28+2*i,2)} offset:{512*i}')
    A(f'v_xor_b32 v2, s{sTAG}, v52')
    A('v_and_b32 v2, 0xff, v2')
    for r in range(16, 24):
        A(f'v_bitop3_b32 v2, v2, v{r}, s{sTAG} bitop3:0xf6')
    A('v_and_b32 v2, 0xffff, v2')
    A('v_cmp_ne_u32 vcc, 0, v2')
    spin_end(lab)
    stamp(13)
    gemv(14)
    A.nop(8)
    A('ds_write_b32 v12, v40')
    A.wait0(lg=True)
    A(f'''
    s_barrier
    s_cmp_lg_u32 s{sW}, 0
    s_cbranch_scc1 L_fin
    ds_read2_b32 v[44:45], v13 offset0:0 offset1:16
    ds_read2_b32 v[46:47], v13 offset0:32 offset1:48
    v_and_b32 v52, 0xffffff00, v52
    s_waitcnt lgkmcnt(0)
    v_add_f32 v44, v44, v45
    v_add_f32 v46, v46, v47
    v_add_f32 v44, v44, v46
    v_fma_f32 v44, v44, v51, v52
    v_cvt_pk_bf16_f32 v44, v44, v44
    s_mov_b64 exec, 0xffff
    buffer_store_short v44, v11, {s(R_OUT,4)}, s{sSLOT} offen sc1
    s_mov_b64 exec, -1
    ''')
    stamp(14)
    A.label('L_fin')
    if opt.get('leak') is not None:
        A.wait0(vm=True)
        stamp(15)
        A.nop(2)
        A(f'v_readlane_b32 s{sA}, v{vSTAMP}, 0')
        A(f'v_readlane_b32 s{sB}, v{vSTAMP}, {opt["leak"]}')
        A(f's_cmp_eq_u32 s{sB}, 0')
        A(f's_cselect_b32 s{sB}, s{sA}, s{sB}')
        A(f's_sub_u32 s{sB}, s{sB}, s{sA}')
        if opt.get('diag') is not None:
            A(f's_mov_b32 s{sB}, s89')
        A(f's_min_u32 s{sB}, s{sB}, 10000')
        A(f's_mul_i32 s{sB}, s{sB}, 10')
        A(f's_add_u32 s{sB}, s{sB}, 6000')
        A.label('L_leak')
        A(f's_memrealtime {s(sST,2)}')
        A.wait0(lg=True)
        A(f's_sub_u32 s{sC}, s{sST}, s{sA}')
        A(f's_cmp_lt_u32 s{sC}, s{sB}')
        A('s_cbranch_scc1 L_leak')
    elif stamps:
        A.wait0(vm=True)
        stamp(15)
        A(f'''
        s_lshl_b32 s{sA}, s2, 2
        s_add_u32 s{sA}, s{sA}, s{sW}
        s_lshl_b32 s{sA}, s{sA}, 8
        s_add_u32 s{sA}, s{sA}, {W_STAMP}
        v_lshlrev_b32 v2, 2, v{vL}
        buffer_store_dword v{vSTAMP}, v2, {s(R_WS,4)}, s{sA} offen
        ''')
    A.label('L_end')
    A('s_endpgm')
    return A


def hexf(x):
    import struct
    return hex(struct.unpack('<I', struct.pack('<f', x))[0])


def build(opt):
    A = gen(opt)
    errs = check(A.lines)
    for e in errs:
        print('CHECK:', e, file=sys.stderr)
    ref = open(f'cdna_kernels/{NAME}.s.ref').read().split('\n')
    head = [ln for ln in ref if ln.startswith(';') and '@launch' not in ln and 'Override' not in ln and 'grid=ceil' not in ln]
    k = NAME + '_kernel'
    txt = '\n'.join(head) + f'''
; @launch grid=(256,1,1) block=(256,1,1) lds={L_TOTAL}
.amdgcn_target "amdgcn-amd-amdhsa--gfx950"
.text
.globl {k}
.p2align 8
.type {k},@function
{k}:
''' + A.text() + f'''.section .rodata,"a"
.p2align 6
.amdhsa_kernel {k}
  .amdhsa_next_free_vgpr 512
  .amdhsa_next_free_sgpr 102
  .amdhsa_accum_offset 256
  .amdhsa_group_segment_fixed_size 0
  .amdhsa_kernarg_size 128
  .amdhsa_user_sgpr_count 2
  .amdhsa_user_sgpr_kernarg_segment_ptr 1
  .amdhsa_system_sgpr_workgroup_id_x 1
  .amdhsa_float_denorm_mode_32 3
.end_amdhsa_kernel
'''
    return txt, errs


if __name__ == '__main__':
    out = sys.argv[1]
    opt = {}
    for a in sys.argv[2:]:
        k_, val = a.split('=')
        opt[k_] = int(val)
    txt, errs = build(opt)
    open(out, 'w').write(txt)
    sys.exit(1 if errs else 0)
```

```python
import sys
from asmlib import Asm, v, a_, s, check

NAME = 'adaLN_cond__ssm_conv_h3__moe_arch_mod__prompt'

W_EPOCH = 0
W_FLAG1 = 0x1000
W_FLAGC = 0x1A000
W_KEYS  = 0x20000
W_MOD   = 0x22000
W_HID   = 0x26000
W_ROWS  = 0x30000
W_BASE  = 0xD0000
W_KVT   = 0x200000
W_Y     = 0x500000
W_STAMP = 0x800000
W_SIZE  = 0x900000

L_KC, KCW, KC1 = 0, 8320, 4160
L_XB, XBW = 33280, 4608
L_YS = 51712
L_WB1 = 0
L_WB2 = 81920
L_XA, XAW = 139264, 1280
L_MOD = 144384
L_SCR = 159744
L_TOTAL = 160256

P_Q, P_K, P_V, P_SH, P_SK, P_SD, P_BX, P_WR = 4, 6, 8, 10, 12, 14, 16, 18
P_WG, P_WU, P_WD, P_C, P_WM, P_OUT, P_DBG, P_WS = 20, 22, 24, 26, 28, 30, 32, 34
R_K, R_V, R_WS, R_Q, R_OUT, R_G1, R_G2, R_SH, R_WR = 36, 40, 44, 48, 52, 56, 60, 64, 68
sX, sJ, sW, sT = 72, 73, 74, 75
sC4, sC8, sC12, sC16, sC5120 = 76, 77, 78, 79, 80
sA, sB, sC, sD_, sE = 81, 82, 83, 84, 85
sSD, sKEY, sSLOT = 86, 87, 88
sSPIN, sHI, sPLO, sPHI, sTAG, sF, sROLE, sMI = 90, 91, 92, 93, 94, 95, 96, 97
sST = 98
SOFF = ['0', s(sC4), s(sC8), s(sC12), s(sC16)]
vL = 1
vSTAMP = 255
SPIN = 0x20000


def gen(opt):
    FS1 = opt.get('fs1', 16)
    FSC = opt.get('fsc', 16)
    PD = opt.get('pd', 8)
    NB = PD + 2
    stamps = opt.get('stamps', False)
    A = Asm()
    NT = ' nt' if opt.get('nt') else ''

    def stamp(k):
        if not stamps:
            return
        if opt.get('leak') is not None and k != opt['leak']:
            return
        A(f's_memrealtime {s(sST,2)}')
        A.wait0(lg=True)
        A(f'v_writelane_b32 v{vSTAMP}, s{sST}, {k}')

    def srd(r, p, size):
        A(f's_mov_b64 {s(r,2)}, {s(p,2)}')
        A(f's_mov_b32 s{r+2}, {size}')
        A(f's_mov_b32 s{r+3}, 0x20000')

    def spin_begin(name):
        lab = A.newlabel(name)
        A(f's_mov_b32 s{sSPIN}, {SPIN}')
        A.label(lab)
        return lab

    def spin_end(lab):
        ok = lab + '_ok'
        A(f's_cbranch_vccz {ok}')
        A(f's_sub_u32 s{sSPIN}, s{sSPIN}, 1')
        A(f's_cbranch_scc0 {lab}')
        A.label(ok)

    def unpack(dst, src):
        A(f'v_lshlrev_b32 v{dst}, 16, v{src}')
        A(f'v_and_b32 v{dst+1}, s{sHI}, v{src}')

    def red32(rs, tmp, op='add_f32'):
        pad = max(0, 2 - (len(rs) - 1))
        for sh in (8, 4, 2, 1):
            A.nop(pad if sh != 8 else 2)
            for r in rs:
                A(f'v_{op}_dpp v{r}, v{r}, v{r} row_ror:{sh} row_mask:0xf bank_mask:0xf')
        for i, r in enumerate(rs):
            A(f'v_mov_b32 v{tmp+i}, v{r}')
        A.nop(2)
        for i, r in enumerate(rs):
            A(f'v_permlane16_swap_b32 v{tmp+i}, v{r}')
        for i, r in enumerate(rs):
            A(f'v_{op} v{r}, v{tmp+i}, v{r}')

    def sum20(dst, src, tmp):
        for i in range(5):
            A(f'v_pk_add_f32 {v(tmp+2*i,2)}, {v(src+4*i,2)}, {v(src+4*i+2,2)}')
        A(f'v_pk_add_f32 {v(tmp,2)}, {v(tmp,2)}, {v(tmp+2,2)}')
        A(f'v_pk_add_f32 {v(tmp+4,2)}, {v(tmp+4,2)}, {v(tmp+6,2)}')
        A(f'v_pk_add_f32 {v(tmp,2)}, {v(tmp,2)}, {v(tmp+8,2)}')
        A(f'v_pk_add_f32 {v(tmp,2)}, {v(tmp,2)}, {v(tmp+4,2)}')
        A(f'v_add_f32 v{dst}, v{tmp}, v{tmp+1}')

    def dots20(items):
        for i in range(10):
            for (d, x, y, t) in items:
                if i == 0:
                    A(f'v_pk_mul_f32 {v(t,2)}, {v(x,2)}, {v(y,2)}')
                else:
                    A(f'v_pk_fma_f32 {v(t,2)}, {v(x+2*i,2)}, {v(y+2*i,2)}, {v(t,2)}')
        for (d, x, y, t) in items:
            A(f'v_add_f32 v{d}, v{t}, v{t+1}')

    def quadpos(dst, src, tmp):
        A(f'v_and_b32 v{tmp}, 1, v{src}')
        A(f'v_bfe_u32 v{dst}, v{src}, 1, 1')
        A(f'v_lshl_or_b32 v{dst}, v{tmp}, 1, v{dst}')
        A(f'v_and_b32 v{tmp}, -4, v{src}')
        A(f'v_or_b32 v{dst}, v{tmp}, v{dst}')
        A(f'v_lshlrev_b32 v{dst}, 3, v{dst}')

    def dma_loop(voff, r, n, gstep, lds0, g0=None):
        lab = A.newlabel('dma')
        A(f's_mov_b32 m0, {lds0}')
        A(f's_mov_b32 s{sA}, {g0 if g0 is not None else 0}')
        A(f's_mov_b32 s{sB}, {n}')
        A.label(lab)
        A(f'buffer_load_dwordx4 v{voff}, {s(r,4)}, s{sA} offen{NT} lds')
        A(f's_add_u32 s{sA}, s{sA}, {gstep}')
        A(f's_add_u32 m0, m0, 1024')
        A(f's_sub_u32 s{sB}, s{sB}, 1')
        A(f's_cmp_lg_u32 s{sB}, 0')
        A(f's_cbranch_scc1 {lab}')

    A('s_cmp_ge_u32 s2, 256')
    A('s_cbranch_scc1 L_end')
    A('s_load_dwordx16 s[4:19], s[0:1], 0')
    A('s_load_dwordx16 s[20:35], s[0:1], 64')
    if opt.get('pf'):
        A('s_getpc_b64 s[36:37]')
        A.label('L_pc')
        A('v_lshlrev_b32 v3, 7, v0')
        A('v_min_u32 v3, L_end-L_pc, v3')
        A('global_load_dword v254, v3, s[36:37]')
    if stamps:
        A(f's_memrealtime {s(sST,2)}')
        A(f'v_mov_b32 v{vSTAMP}, 0')
    A(f'v_lshrrev_b32 v2, 6, v0')
    A(f'v_and_b32 v{vL}, 63, v0')
    A(f's_and_b32 s{sX}, s2, 7')
    A(f'v_readfirstlane_b32 s{sW}, v2')
    A(f's_lshr_b32 s{sJ}, s2, 3')
    for r, c in ((sC4, 4096), (sC8, 8192), (sC12, 12288), (sC16, 16384), (sC5120, 5120),
                 (sHI, 0xffff0000), (sPLO, 0x05040100), (sPHI, 0x07060302)):
        A(f's_mov_b32 s{r}, {hex(c)}')
    A(f'''
    s_mul_i32 s{sA}, s{sX}, 7
    s_add_u32 s{sA}, s{sA}, s{sJ}
    s_cmp_lt_u32 s{sJ}, 23
    s_cselect_b32 s{sB}, 20, 25
    s_sub_u32 s{sF}, s{sA}, s{sB}
    s_cmp_lt_u32 s{sF}, 54
    s_cselect_b32 s{sROLE}, 1, 3
    s_sub_u32 s{sA}, s2, 120
    s_cmp_lt_u32 s{sJ}, 23
    s_cselect_b32 s{sMI}, s{sA}, 99
    s_mul_i32 s{sA}, s{sX}, 5
    s_add_u32 s{sA}, s{sA}, s{sJ}
    s_sub_u32 s{sA}, s{sA}, 23
    s_sub_u32 s{sB}, s2, 184
    s_cmp_lt_u32 s{sB}, 40
    s_cselect_b32 s{sF}, s{sA}, s{sF}
    s_cselect_b32 s{sMI}, s{sB}, s{sMI}
    s_cselect_b32 s{sROLE}, 2, s{sROLE}
    s_cmp_lt_u32 s{sJ}, 20
    s_cselect_b32 s{sROLE}, 0, s{sROLE}
    ''')
    vM, vH, vS, vT = 4, 5, 6, 7
    A(f'''
    v_and_b32 v2, 7, v{vL}
    v_lshrrev_b32 v3, 3, v{vL}
    s_mul_i32 s{sA}, s{sJ}, 81920
    s_mul_i32 s{sB}, s{sX}, 160
    s_lshl_b32 s{sC}, s{sW}, 6
    s_add_u32 s{sA}, s{sA}, s{sB}
    s_add_u32 s{sA}, s{sA}, s{sC}
    v_mul_u32_u24 v{vM}, 10240, v2
    v_lshl_add_u32 v{vM}, v3, 3, v{vM}
    v_add_u32 v{vM}, s{sA}, v{vM}
    v_subrev_u32 v{vH}, 3840, v{vM}
    s_add_u32 s{sB}, s{sB}, s{sC}
    s_lshl_b32 s{sB}, s{sB}, 2
    v_lshlrev_b32 v{vS}, 5, v3
    v_add_u32 v{vS}, s{sB}, v{vS}
    s_lshl_b32 s{sB}, s{sB}, 9
    s_lshl_b32 s{sC}, s{sJ}, 7
    s_add_u32 s{sB}, s{sB}, s{sC}
    s_add_u32 s{sB}, s{sB}, {W_KVT}
    v_lshlrev_b32 v{vT}, 14, v3
    v_lshl_add_u32 v{vT}, v2, 4, v{vT}
    v_add_u32 v{vT}, s{sB}, v{vT}
    ''')
    A.wait0(lg=True)
    if stamps:
        A(f'v_writelane_b32 v{vSTAMP}, s{sST}, 0')
    if opt.get('wsoff'):
        A(f's_add_u32 s{P_WS}, s{P_WS}, {opt["wsoff"]<<20}')
        A(f's_addc_u32 s{P_WS+1}, s{P_WS+1}, 0')
    srd(R_K, P_K, 2621440)
    srd(R_V, P_V, 2621440)
    srd(R_SH, P_SH, 5120)
    srd(R_WS, P_WS, W_SIZE)
    srd(R_Q, P_Q, 2621440)
    srd(R_OUT, P_OUT, 2621440)
    srd(R_WR, P_WR, 1280)
    dg = opt.get('diag')
    if dg is not None:
        A('s_mov_b32 s89, 0')
        if dg in (8, 9, 10, 11):
            pol = ' nt' if dg in (9, 11) else ''
            if dg >= 10:
                A('s_memrealtime s[98:99]')
                A('s_waitcnt lgkmcnt(0)')
                A('s_add_u32 s81, s98, 1024')
                A('s_and_b32 s81, s81, 0xfffffe00')
                A.label('L_dgw')
                A('s_memrealtime s[98:99]')
                A('s_waitcnt lgkmcnt(0)')
                A('s_cmp_lt_u32 s98, s81')
                A('s_cbranch_scc1 L_dgw')
            A('s_lshl_b32 s81, s2, 14')
            A('s_lshl_b32 s82, s2, 13')
            A('v_lshlrev_b32 v20, 4, v0')
            for i in range(4):
                A(f'v_add_u32 v{22+i}, s81, v20')
                A('s_add_u32 s81, s81, 4096')
            A('v_add_u32 v26, s82, v20')
            A('v_add_u32 v27, 4096, v26')
            A('s_memrealtime s[98:99]')
            A('s_waitcnt lgkmcnt(0)')
            A('s_mov_b32 s89, s98')
            for i in range(4):
                A(f'global_load_dwordx4 {v(32+4*i,4)}, v{22+i}, {s(P_WM,2)}{pol}')
            for i in range(2):
                A(f'global_load_dwordx4 {v(48+4*i,4)}, v{26+i}, {s(P_BX,2)}{pol}')
                A(f'global_load_dwordx4 {v(56+4*i,4)}, v{26+i}, {s(P_WG,2)}{pol}')
            A('s_waitcnt vmcnt(0)')
            A('s_memrealtime s[98:99]')
            A('s_waitcnt lgkmcnt(0)')
            A('s_sub_u32 s89, s98, s89')
            A('s_add_u32 s81, s98, 600')
            A.label('L_dgx')
            A('s_memrealtime s[98:99]')
            A('s_waitcnt lgkmcnt(0)')
            A('s_cmp_lt_u32 s98, s81')
            A('s_cbranch_scc1 L_dgx')
            A('s_branch L_dg_done')
        if opt.get('quiet'):
            A('s_cmp_eq_u32 s2, 100')
            A('s_cbranch_scc1 L_dg_me')
            A('s_memrealtime s[98:99]')
            A('s_waitcnt lgkmcnt(0)')
            A('s_add_u32 s81, s98, 800')
            A.label('L_dgq')
            A('s_memrealtime s[98:99]')
            A('s_waitcnt lgkmcnt(0)')
            A('s_cmp_lt_u32 s98, s81')
            A('s_cbranch_scc1 L_dgq')
            A.label('L_dg_me')
        A('s_cmp_lg_u32 s2, 100')
        A('s_cbranch_scc1 L_dg_done')
        A('v_lshlrev_b32 v20, 2, v1')
        if dg in (1, 2, 3, 6, 7):
            src = {1: (P_WM, 3000000), 2: (P_WS, 0x700000), 3: (P_WS, 0xF000000), 6: (P_Q, 1000000), 7: (P_OUT, 1000000)}[dg]
            A(f'v_add_u32 v20, {src[1]}, v20')
            A(f'global_load_dword v21, v20, {s(src[0],2)}')
            A('s_waitcnt vmcnt(0)')
            A('s_memtime s[100:101]')
            A('s_waitcnt lgkmcnt(0)')
            A('s_mov_b32 s89, s100')
            A(f'global_load_dword v21, v20, {s(src[0],2)} offset:2048')
            A('s_waitcnt vmcnt(0)')
            A('s_memtime s[100:101]')
            A('s_waitcnt lgkmcnt(0)')
            A('s_sub_u32 s89, s100, s89')
        if dg == 4:
            A('s_memtime s[100:101]')
            A('s_waitcnt lgkmcnt(0)')
            A('s_mov_b32 s89, s100')
            for i in range(64):
                A(f's_branch L_dgb{i}')
                for _ in range(31):
                    A('s_nop 0')
                A.label(f'L_dgb{i}')
            A('s_memtime s[100:101]')
            A('s_waitcnt lgkmcnt(0)')
            A('s_sub_u32 s89, s100, s89')
        if dg == 5:
            A('s_memrealtime s[98:99]')
            A('s_memtime s[100:101]')
            A('s_waitcnt lgkmcnt(0)')
            A('s_mov_b32 s89, s100')
            A('s_add_u32 s81, s98, 100')
            A.label('L_dgc')
            A('s_memrealtime s[98:99]')
            A('s_memtime s[100:101]')
            A('s_waitcnt lgkmcnt(0)')
            A('s_cmp_lt_u32 s98, s81')
            A('s_cbranch_scc1 L_dgc')
            A('s_sub_u32 s89, s100, s89')
        A.label('L_dg_done')
    A(f's_load_dword s{sT}, {s(P_WS,2)}, {W_EPOCH}')
    A(f'''
    s_mul_i32 s{sA}, s{sX}, 80
    s_lshl_b32 s{sB}, s{sJ}, 2
    s_add_u32 s{sA}, s{sA}, s{sB}
    s_add_u32 s{sA}, s{sA}, s{sW}
    s_min_u32 s{sA}, s{sA}, 639
    s_lshr_b32 s{sA}, s{sA}, 1
    s_lshl_b32 s{sA}, s{sA}, 2
    s_load_dword s{sSD}, {s(P_SD,2)}, s{sA}
    s_cmp_eq_u32 s{sW}, 3
    s_cbranch_scc1 L_loader
    ''')

    KR, VR, SR, WF, KF, VF, KS, KO = 16, 38, 54, 64, 80, 124, 156, 188
    A(f's_cmp_eq_u32 s{sW}, 2')
    A(f's_cselect_b32 exec_hi, 0, -1')
    A.vm_n = 0
    A.vm(f'buffer_load_dwordx4 {v(SR,4)}, v{vS}, {s(R_SH,4)}, 0 offen')
    hS = A.vm(f'buffer_load_dwordx4 {v(SR+4,4)}, v{vS}, {s(R_SH,4)}, 0 offen offset:16')
    hK = []
    for i in range(3):
        hK.append(A.vm(f'buffer_load_dwordx2 {v(KR+2*i,2)}, v{vH}, {s(R_K,4)}, 0 offen offset:{1280*i}{NT}'))
    for i in range(8):
        so = '0' if i < 4 else s(sC5120)
        hK.append(A.vm(f'buffer_load_dwordx2 {v(KR+6+2*i,2)}, v{vM}, {s(R_K,4)}, {so} offen offset:{1280*(i&3)}{NT}'))
    hV = []
    for i in range(8):
        so = '0' if i < 4 else s(sC5120)
        hV.append(A.vm(f'buffer_load_dwordx2 {v(VR+2*i,2)}, v{vM}, {s(R_V,4)}, {so} offen offset:{1280*(i&3)}{NT}'))
    A.wait(vm=hS)
    for c in range(4):
        A(f'v_lshlrev_b32 v{WF+c}, 16, v{SR+2*c}')
        A(f'v_and_b32 v{WF+4+c}, s{sHI}, v{SR+2*c}')
        A(f'v_lshlrev_b32 v{WF+8+c}, 16, v{SR+2*c+1}')
        A(f'v_and_b32 v{WF+12+c}, s{sHI}, v{SR+2*c+1}')
    for i in range(11):
        if i in (0, 4, 8):
            A.wait(vm=hK[min(i + 3, 10)])
        unpack(KF + 4 * i, KR + 2 * i)
        unpack(KF + 4 * i + 2, KR + 2 * i + 1)
        t = i - 3
        if t >= 0:
            for jt in (3, 2, 1, 0):
                for p in range(2):
                    d = v(KS + 4 * t + 2 * p, 2)
                    x = v(KF + 4 * (t + 3 - jt) + 2 * p, 2)
                    w = v(WF + 4 * jt + 2 * p, 2)
                    if jt == 3:
                        A(f'v_pk_mul_f32 {d}, {x}, {w}')
                    else:
                        A(f'v_pk_fma_f32 {d}, {x}, {w}, {d}')
    stamp(1)
    for t in range(8):
        if t in (0, 4):
            A.wait(vm=hV[t + 3])
        unpack(VF + 4 * t, VR + 2 * t)
        unpack(VF + 4 * t + 2, VR + 2 * t + 1)
        for p in range(2):
            A(f'v_pk_mul_f32 {v(KS+4*t+2*p,2)}, {v(KS+4*t+2*p,2)}, {v(VF+4*t+2*p,2)}')
    for c in range(4):
        for m in range(4):
            A(f'v_cvt_pk_bf16_f32 v{KO+4*c+m}, v{KS+4*(7-2*m)+c}, v{KS+4*(6-2*m)+c}')
        A.vm(f'buffer_store_dwordx4 {v(KO+4*c,4)}, v{vT}, {s(R_WS,4)}, {SOFF[c]} offen sc1')
    A('s_mov_b64 exec, -1')
    A.wait0(lg=True)
    A(f's_add_u32 s{sT}, s{sT}, 1')
    A(f's_and_b32 s{sTAG}, s{sT}, 0xffff')
    stamp(2)
    vFA, vFV = 8, 9
    A(f'''
    s_mul_i32 s{sA}, s{sX}, 3
    s_add_u32 s{sA}, s{sA}, s{sW}
    s_lshl_b32 s{sA}, s{sA}, 5
    s_add_u32 s{sA}, s{sA}, s{sJ}
    s_mul_i32 s{sA}, s{sA}, {FS1}
    s_add_u32 s{sA}, s{sA}, {W_FLAG1}
    v_mov_b32 v{vFA}, s{sA}
    v_mov_b32 v{vFV}, s{sT}
    s_cmp_eq_u32 s{sROLE}, 0
    s_cbranch_scc1 L_conv
    ''')

    def publish_flag():
        A.wait0(vm=True)
        A('s_mov_b64 exec, 1')
        A(f'buffer_store_dword v{vFV}, v{vFA}, {s(R_WS,4)}, 0 offen sc1')
        A('s_mov_b64 exec, -1')

    publish_flag()
    stamp(3)
    A('s_branch L_n1')

    A.label('L_loader')
    A(f's_cmp_lg_u32 s{sROLE}, 0')
    A('s_cbranch_scc1 L_loader_n')
    srd(R_G1, P_SK, 2621440)
    vK, vP0, vZ, vY, vD = 4, 5, 8, 6, 7
    A(f'''
    s_mul_i32 s{sA}, s{sX}, 20
    s_add_u32 s{sA}, s{sA}, s{sJ}
    s_lshl_b32 s{sB}, s{sA}, 14
    v_lshlrev_b32 v{vD}, 4, v{vL}
    v_add_u32 v{vK}, s{sB}, v{vD}
    v_add_u32 v{vP0}, -4, v{vK}
    v_bfrev_b32 v2, 1
    v_cmp_eq_u32 vcc, 0, v{vL}
    s_nop 1
    v_cndmask_b32 v{vP0}, v{vP0}, v2, vcc
    ''')
    A.vm_n = 0
    hk = []
    for cw in range(4):
        for i in range(4):
            idx = cw * 4 + i
            A.vm(f'buffer_load_dwordx4 {v(16+4*idx,4)}, v{vK}, {s(R_G1,4)}, {SOFF[cw]} offen offset:{1024*i}{NT}')
            if i == 0:
                hk.append(A.vm(f'buffer_load_dword v{80+idx}, v{vP0}, {s(R_G1,4)}, {SOFF[cw]} offen{NT}'))
            else:
                hk.append(A.vm(f'buffer_load_dword v{80+idx}, v{vK}, {s(R_G1,4)}, {SOFF[cw]} offen offset:{1024*i-4}{NT}'))
    A(f'''
    s_lshl_b32 s{sB}, s{sA}, 7
    s_add_u32 s{sB}, s{sB}, {W_Y}
    v_lshrrev_b32 v2, 3, v{vL}
    v_and_b32 v3, 7, v{vL}
    v_mul_u32_u24 v{vY}, 20480, v2
    v_lshl_add_u32 v{vY}, v3, 4, v{vY}
    v_add_u32 v{vY}, s{sB}, v{vY}
    v_mov_b32 v12, -1
    v_mov_b32 v13, -1
    v_mov_b32 v14, -1
    v_mov_b32 v15, -1
    s_mov_b32 s{sC}, 0
    ''')
    for i in range(16):
        A.vm(f'buffer_store_dwordx4 v[12:15], v{vY}, {s(R_WS,4)}, s{sC} offen sc1')
        A(f's_add_u32 s{sC}, s{sC}, 163840')
    A.wait0(lg=True)
    A(f's_add_u32 s{sT}, s{sT}, 1')
    A(f's_and_b32 s{sTAG}, s{sT}, 0xffff')
    for i in range(4):
        A(f'v_mov_b32 v{vZ+i}, 0')
    A(f'''
    v_lshrrev_b32 v2, 5, v{vL}
    v_and_b32 v3, 31, v{vL}
    v_mul_u32_u24 v2, {XBW}, v2
    v_lshl_add_u32 v2, v3, 4, v2
    ds_write_b128 v2, {v(vZ,4)} offset:{L_XB}
    ds_write_b128 v2, {v(vZ,4)} offset:{L_XB+2*XBW}
    v_bfe_u32 v2, v{vL}, 1, 3
    v_and_b32 v3, 1, v{vL}
    v_mul_u32_u24 v2, {KC1}, v2
    v_lshl_add_u32 v2, v3, 4, v2
    ds_write_b128 v2, {v(vZ,4)} offset:{L_KC}
    ''')
    for cw in range(4):
        for i in range(4):
            idx = cw * 4 + i
            d, t = 16 + 4 * idx, 96 + 4 * (idx & 3)
            A.wait(vm=hk[idx])
            A(f'ds_write_b128 v{vD}, {v(d,4)} offset:{L_KC+cw*KCW+32+1024*i}')
            A(f'v_alignbyte_b32 v{t}, v{d}, v{80+idx}, 2')
            for m in range(1, 4):
                A(f'v_alignbyte_b32 v{t+m}, v{d+m}, v{d+m-1}, 2')
            A(f'ds_write_b128 v{vD}, {v(t,4)} offset:{L_KC+cw*KCW+KC1+32+1024*i}')
    stamp(2)
    A(f'''
    s_mul_i32 s{sA}, s{sA}, {FSC}
    s_add_u32 s{sA}, s{sA}, {W_FLAGC}
    v_mov_b32 v{vFA}, s{sA}
    v_mov_b32 v{vFV}, s{sT}
    ''')
    A.wait0(lg=True)

    A.label('L_conv')
    vA0, vB, vAD, vYW, vYR, vYG = 10, 14, 16, 20, 21, 22
    A(f'''
    v_and_b32 v2, 15, v{vL}
    v_lshrrev_b32 v3, 4, v{vL}
    v_lshlrev_b32 v4, 3, v3
    v_sub_u32 v4, v2, v4
    v_add_u32 v4, 25, v4
    v_and_b32 v5, 1, v4
    v_mul_u32_u24 v5, {KC1+2}, v5
    v_lshl_add_u32 v5, v4, 1, v5
    s_mul_i32 s{sA}, s{sW}, {KCW}
    v_add_u32 v{vA0}, s{sA}, v5
    v_add_u32 v{vA0+1}, 1024, v{vA0}
    v_add_u32 v{vA0+2}, 2048, v{vA0}
    v_add_u32 v{vA0+3}, 3072, v{vA0}
    s_barrier
    ''')
    NPRE = opt.get('npre', 40)

    def afrag(q):
        o = 16 * (q & 15)
        A(f'ds_read2_b32 {a_(4*q,2)}, v{vA0+(q>>4)} offset0:{o} offset1:{o+1}')
        A(f'ds_read2_b32 {a_(4*q+2,2)}, v{vA0+(q>>4)} offset0:{o+2} offset1:{o+3}')
    for q in range(NPRE):
        afrag(q)
    publish_flag()
    stamp(3)
    for q in range(NPRE, 64):
        afrag(q)
    A(f'''
    v_sub_u32 v4, 16, v4
    s_bitcmp1_b32 s{sW}, 0
    s_cselect_b32 s{sA}, 16, 0
    s_lshr_b32 s{sSD}, s{sSD}, s{sA}
    s_and_b32 s{sSD}, s{sSD}, 0xffff
    v_and_b32 v5, 1, v4
    v_lshlrev_b32 v5, 4, v5
    v_lshlrev_b32 v5, v5, s{sSD}
    v_ashrrev_i32 v4, 1, v4
    ''')
    for m in range(4):
        A(f'v_cmp_eq_u32 vcc, {m}, v4')
        A.nop(2)
        A(f'v_cndmask_b32 v{vAD+m}, 0, v5, vcc')
    A(f'''
    s_mul_i32 s{sA}, s{sW}, {XBW}
    s_add_u32 s{sA}, s{sA}, {L_XB+32}
    v_lshlrev_b32 v{vB}, 5, v2
    v_lshl_add_u32 v{vB}, v3, 4, v{vB}
    v_add_u32 v{vB}, s{sA}, v{vB}
    s_add_u32 m0, s{sA}, 480
    s_lshl_b32 s{sA}, s{sW}, 10
    v_lshlrev_b32 v{vYW}, 5, v2
    v_lshl_add_u32 v{vYW}, v3, 3, v{vYW}
    v_add_u32 v{vYW}, s{sA}, v{vYW}
    v_lshlrev_b32 v{vYR}, 2, v0
    v_add_u32 v{vYR}, {L_YS}, v{vYR}
    s_mul_i32 s{sA}, s{sX}, 20
    s_add_u32 s{sA}, s{sA}, s{sJ}
    s_lshl_b32 s{sB}, s{sA}, 7
    s_add_u32 s{sB}, s{sB}, {W_Y}
    v_lshrrev_b32 v4, 3, v0
    v_and_b32 v5, 7, v0
    v_mul_u32_u24 v{vYG}, 20480, v4
    v_lshl_add_u32 v{vYG}, v5, 4, v{vYG}
    v_add_u32 v{vYG}, s{sB}, v{vYG}
    s_lshl_b32 s{sA}, s{sA}, 14
    s_lshl_b32 s{sB}, s{sW}, 12
    s_add_u32 s{sA}, s{sA}, s{sB}
    s_add_u32 s{sA}, s{sA}, {W_KVT}
    v_lshlrev_b32 v6, 4, v{vL}
    v_add_u32 v6, s{sA}, v6
    s_mul_i32 s{sA}, s{sX}, 3
    s_lshr_b32 s{sB}, s{sJ}, 3
    s_add_u32 s{sA}, s{sA}, s{sB}
    s_mul_i32 s{sA}, s{sA}, {32*FS1}
    s_add_u32 s{sA}, s{sA}, {W_FLAG1}
    v_and_b32 v7, 31, v{vL}
    v_mul_u32_u24 v7, {FS1}, v7
    v_add_u32 v7, s{sA}, v7
    ''')
    stamp(4)
    lab = spin_begin('kv')
    A(f'buffer_load_dword v4, v7, {s(R_WS,4)}, 0 offen sc1')
    A.wait0(vm=True)
    A(f'v_cmp_ne_u32 vcc, s{sT}, v4')
    spin_end(lab)
    stamp(5)
    A.vm_n = 0
    hx = [A.vm(f'buffer_load_dwordx4 v6, {s(R_WS,4)}, 0 offen offset:{1024*i} sc1 lds') for i in range(4)]
    A.wait0(lg=True)
    A.lg_n = 0

    BR, ACC, YP, YQ, YO = 32, 96, 112, 120, 124
    steps = []
    for p in range(4):
        t0, t1 = 2 * p, 2 * p + 1
        for b in range(t1 + 1):
            for r in range(8):
                mf = []
                if b <= t0:
                    mf.append((0, 8 * (t0 - b) + r))
                mf.append((1, 8 * (t1 - b) + r))
                if r == 0 and b == t0:
                    mf.append((0, -1))
                if r == 0 and b == t1:
                    mf.append((1, -1))
                steps.append(dict(p=p, b=b, r=r, w=8 * b - r, mf=mf))
    nst = len(steps)
    ev = {}
    pend = {}
    for p in range(4):
        last = max(i for i, st in enumerate(steps) if st['p'] == p)
        ev.setdefault(last - 8 + 6, []).append(('cvt', p, 0))
        ev.setdefault(last + 3, []).append(('cvt', p, 1))
        ev.setdefault(last + 7, []).append(('bar', p))
        ev.setdefault(last + 11, []).append(('st', p))
    hB = {}
    landed = [-1]

    def bread(i):
        st = steps[i]
        blk = st['b'] >> 1
        if blk > landed[0]:
            A.wait(vm=hx[blk])
            landed[0] = blk
        hB[i] = A.lg(f'ds_read_b128 {v(BR+4*(i%NB),4)}, v{vB} offset:{64*(st["w"]+7)}')

    def event(e):
        p = e[1]
        if e[0] == 'cvt':
            acc = ACC + 8 * (p & 1) + 4 * e[2]
            d = YP + 2 * e[2]
            A(f'v_cvt_pk_bf16_f32 v{d}, v{acc}, v{acc+1}')
            A(f'v_cvt_pk_bf16_f32 v{d+1}, v{acc+2}, v{acc+3}')
            pend[p] = A.lg(f'ds_write_b64 v{vYW}, {v(d,2)} offset:{L_YS+4096*p+512*e[2]}')
        elif e[0] == 'bar':
            A.wait(lg=pend[p])
            A('s_barrier')
            A.lg(f'ds_read2st64_b32 {v(YQ,2)}, v{vYR} offset0:{16*p} offset1:{16*p+4}')
            pend[p] = A.lg(f'ds_read2st64_b32 {v(YQ+2,2)}, v{vYR} offset0:{16*p+8} offset1:{16*p+12}')
        else:
            A.wait(lg=pend[p])
            A(f'v_perm_b32 v{YO}, v{YQ+1}, v{YQ}, s{sPLO}')
            A(f'v_perm_b32 v{YO+1}, v{YQ+3}, v{YQ+2}, s{sPLO}')
            A(f'v_perm_b32 v{YO+2}, v{YQ+1}, v{YQ}, s{sPHI}')
            A(f'v_perm_b32 v{YO+3}, v{YQ+3}, v{YQ+2}, s{sPHI}')
            A(f's_mov_b32 s{sA}, {655360*p}')
            A.vm(f'buffer_store_dwordx4 {v(YO,4)}, v{vYG}, {s(R_WS,4)}, s{sA} offen sc1')

    for i in range(PD):
        bread(i)
    started = set()
    for i, st in enumerate(steps):
        if i + PD < nst:
            bread(i + PD)
        A.wait(lg=hB[i])
        for (k, q) in st['mf']:
            acc = v(ACC + 8 * (st['p'] & 1) + 4 * k, 4)
            src = v(vAD, 4) if q < 0 else a_(4 * q, 4)
            c = acc if (st['p'], k) in started else '0'
            started.add((st['p'], k))
            A(f'v_mfma_f32_16x16x32_bf16 {acc}, {src}, {v(BR+4*(i%NB),4)}, {c}')
        for e in ev.pop(i, []):
            event(e)
    A.nop(8)
    for i in sorted(ev):
        for e in ev[i]:
            event(e)
    stamp(6)
    A('s_branch L_ln')

    A.label('L_loader_n')
    A.wait0(lg=True)
    A(f's_add_u32 s{sT}, s{sT}, 1')
    A(f's_and_b32 s{sTAG}, s{sT}, 0xffff')
    A(f's_cmp_ge_u32 s{sMI}, 60')
    A('s_cbranch_scc1 L_loader_nomod')
    srd(R_G1, P_C, 1280)
    srd(R_G2, P_WM, 4915200)
    A(f'''
    v_lshlrev_b32 v4, 3, v{vL}
    v_and_b32 v5, 31, v{vL}
    v_lshlrev_b32 v6, 3, v5
    buffer_load_dwordx2 v[16:17], v4, {s(R_G1,4)}, 0 offen
    buffer_load_dwordx2 v[18:19], v4, {s(R_G1,4)}, 0 offen offset:512
    buffer_load_dwordx2 v[20:21], v6, {s(R_G1,4)}, 0 offen offset:1024
    v_lshrrev_b32 v2, 3, v{vL}
    v_and_b32 v3, 6, v2
    v_xor_b32 v3, v3, v{vL}
    v_and_b32 v3, 7, v3
    v_mul_u32_u24 v7, 7680, v2
    v_lshl_add_u32 v7, v3, 4, v7
    s_lshl_b32 s{sA}, s{sMI}, 7
    v_add_u32 v7, s{sA}, v7
    ''')
    A.wait0(vm=True)
    dma_loop(7, R_G2, 80, 61440, L_WB1)
    for i in range(6):
        unpack(24 + 2 * i, 16 + i)
    for i in range(12):
        A(f'v_mul_f32 v{40+i}, 0xbfb8aa3b, v{24+i}')
    for i in range(12):
        A(f'v_exp_f32 v{40+i}, v{40+i}')
    for i in range(12):
        A(f'v_add_f32 v{40+i}, 1.0, v{40+i}')
    for i in range(12):
        A(f'v_rcp_f32 v{40+i}, v{40+i}')
    for i in range(12):
        A(f'v_mul_f32 v{24+i}, v{24+i}, v{40+i}')
    for i in range(6):
        A(f'v_cvt_pk_bf16_f32 v{16+i}, v{24+2*i}, v{25+2*i}')
    quadpos(4, vL, 2)
    A(f'v_add_u32 v4, {L_XA}, v4')
    quadpos(6, 5, 2)
    A(f'v_add_u32 v6, {L_XA}, v6')
    A(f'''
    ds_write_b64 v4, v[16:17]
    ds_write_b64 v4, v[18:19] offset:512
    ds_write_b64 v6, v[20:21] offset:1024
    s_cmp_eq_u32 s{sROLE}, 2
    s_cbranch_scc1 L_loader_f2
    ''')
    A.wait0(vm=True, lg=True)
    A('s_branch L_n1')
    A.label('L_loader_f2')
    srd(R_G1, P_WD, 2211840)
    A(f'''
    v_lshrrev_b32 v2, 1, v{vL}
    v_and_b32 v3, 1, v{vL}
    v_mul_u32_u24 v7, 1280, v2
    v_lshl_add_u32 v7, v3, 4, v7
    s_lshl_b32 s{sA}, s{sF}, 5
    v_add_u32 v7, s{sA}, v7
    v_mov_b32 v12, 0
    v_mov_b32 v13, 0
    v_mov_b32 v14, 0
    v_mov_b32 v15, 0
    v_lshlrev_b32 v2, 4, v{vL}
    v_add_u32 v2, {L_WB2+54*1024}, v2
    ds_write_b128 v2, v[12:15]
    ds_write_b128 v2, v[12:15] offset:1024
    ''')
    dma_loop(7, R_G1, 54, 40960, L_WB2)
    A('s_waitcnt vmcnt(54) lgkmcnt(0)')
    A('s_branch L_n1')

    def f1_addr():
        srd(R_G1, P_WG, 2211840)
        srd(R_G2, P_WU, 2211840)
        A(f'''
        v_lshrrev_b32 v2, 2, v{vL}
        v_bfe_u32 v3, v{vL}, 4, 1
        v_xor_b32 v3, v3, v{vL}
        v_and_b32 v3, 3, v3
        v_mul_u32_u24 v6, 3456, v2
        s_lshl_b32 s{sA}, s{sF}, 6
        v_add_u32 v6, s{sA}, v6
        v_xor_b32 v2, 2, v3
        v_lshl_add_u32 v7, v2, 4, v6
        v_lshl_add_u32 v6, v3, 4, v6
        ''')

    A.label('L_loader_nomod')
    A(f's_cmp_lg_u32 s{sROLE}, 1')
    A('s_cbranch_scc1 L_n1')
    f1_addr()
    dma_loop(6, R_G1, 40, 55296, L_WB1)
    dma_loop(7, R_G2, 40, 55296, L_WB1 + 40960)

    A.label('L_n1')
    vKH, vRS, vCC, vAV = 10, 11, 12, 13
    A(f'''
    v_lshrrev_b32 v{vKH}, 4, v{vL}
    v_bfe_u32 v{vRS}, v{vL}, 2, 3
    v_and_b32 v{vCC}, 3, v{vL}
    v_lshrrev_b32 v2, 5, v{vL}
    v_lshl_add_u32 v14, v2, 4, v{vRS}
    s_barrier
    s_cmp_ge_u32 s{sMI}, 60
    s_cbranch_scc1 L_n3
    ''')
    stamp(4)
    A(f'''
    v_lshrrev_b32 v2, 1, v{vRS}
    v_xor_b32 v2, s{sW}, v2
    v_lshlrev_b32 v4, 7, v14
    v_lshl_add_u32 v4, v2, 5, v4
    v_lshl_add_u32 v4, v{vCC}, 3, v4
    v_add_u32 v5, 40960, v4
    v_lshlrev_b32 v{vAV}, 4, v{vKH}
    v_add_u32 v{vAV}, {L_XA}, v{vAV}
    ''')
    A.lg_n = 0
    hq = []
    for q in range(20):
        base, o = (4, q * 4096) if q < 10 else (5, (q - 10) * 4096)
        A.lg(f'ds_read_b128 {v(16+4*q,4)}, v{vAV} offset:{64*q}')
        A.lg(f'ds_read_b64_tr_b16 {v(96+4*q,2)}, v{base} offset:{o}')
        hq.append(A.lg(f'ds_read_b64_tr_b16 {v(98+4*q,2)}, v{base} offset:{o+1024}'))
        if q >= 4:
            A.wait(lg=hq[q - 4])
            A(f'v_mfma_f32_16x16x32_bf16 v[180:183], {v(16+4*(q-4),4)}, {v(96+4*(q-4),4)}, {"0" if q == 4 else "v[180:183]"}')
    for q in range(16, 20):
        A.wait(lg=hq[q])
        A(f'v_mfma_f32_16x16x32_bf16 v[180:183], {v(16+4*q,4)}, {v(96+4*q,4)}, v[180:183]')
    A(f'''
    s_barrier
    s_lshl_b32 s{sA}, s{sMI}, 8
    s_lshl_b32 s{sB}, s{sW}, 6
    s_add_u32 s{sA}, s{sA}, s{sB}
    s_add_u32 s{sA}, s{sA}, {W_MOD}
    v_lshlrev_b32 v2, 2, v{vL}
    v_add_u32 v2, s{sA}, v2
    v_mov_b32 v3, s{sTAG}
    s_nop 0
    v_cvt_pk_bf16_f32 v4, v180, v180
    v_and_or_b32 v4, v4, s{sHI}, v3
    s_mov_b64 exec, 0xffff
    buffer_store_dword v4, v2, {s(R_WS,4)}, 0 offen sc1
    s_mov_b64 exec, -1
    ''')
    stamp(5)
    A(f's_cmp_lg_u32 s{sROLE}, 1')
    A('s_cbranch_scc1 L_n3')
    f1_addr()
    A(f's_mul_i32 s{sC}, s{sW}, 10240')
    A(f's_mul_i32 s{sD_}, s{sW}, 552960')
    dma_loop(6, R_G1, 10, 55296, s(sC), s(sD_))
    A(f's_add_u32 s{sC}, s{sC}, 40960')
    dma_loop(7, R_G2, 10, 55296, s(sC), s(sD_))
    A.label('L_n3')
    A.wait0(vm=True)
    A('s_barrier')
    A(f's_cmp_eq_u32 s{sROLE}, 2')
    A('s_cbranch_scc1 L_n3_f2')
    A(f'''
    v_lshrrev_b32 v2, 1, v{vCC}
    v_and_b32 v3, 2, v{vCC}
    v_and_b32 v4, 1, v{vKH}
    v_xor_b32 v3, v3, v4
    v_xor_b32 v3, s{sW}, v3
    v_mul_u32_u24 v4, 40960, v2
    v_lshl_add_u32 v4, v14, 6, v4
    v_lshl_add_u32 v4, v3, 4, v4
    v_and_b32 v2, 1, v{vCC}
    v_lshl_add_u32 v4, v2, 3, v4
    ''')
    for q in range(20):
        A(f'ds_read_b64_tr_b16 {a_(4*q,2)}, v4 offset:{2048*q}')
        A(f'ds_read_b64_tr_b16 {a_(4*q+2,2)}, v4 offset:{2048*q+512}')
    A('s_branch L_n4')
    A.label('L_n3_f2')
    A(f'''
    s_mul_i32 s{sA}, s{sW}, {448*32}
    s_add_u32 s{sA}, s{sA}, {L_WB2}
    v_lshlrev_b32 v4, 5, v14
    v_lshl_add_u32 v4, v{vCC}, 3, v4
    v_add_u32 v4, s{sA}, v4
    ''')
    for q in range(14):
        A(f'ds_read_b64_tr_b16 {a_(4*q,2)}, v4 offset:{1024*q}')
        A(f'ds_read_b64_tr_b16 {a_(4*q+2,2)}, v4 offset:{1024*q+256}')
    A.label('L_n4')
    A.wait0(lg=True)
    stamp(6)

    A.label('L_ln')
    QR, WRR, YR, MR, FC = 16, 26, 36, 46, 62
    QF, GH, CW, C1, SB, GB, T0, T1, T2 = 64, 84, 104, 124, 144, 164, 184, 204, 224
    vQ, vYA, vMG, vML, vMR, vFC, vTAU, vHL = 4, 5, 6, 7, 8, 9, 10, 11
    X0 = 244
    A(f'''
    v_and_b32 v{vHL}, 31, v{vL}
    v_lshrrev_b32 v{vTAU}, 5, v0
    s_lshr_b32 s{sA}, s{sJ}, 1
    s_lshl_b32 s{sA}, s{sA}, 3
    s_add_u32 s{sA}, s{sA}, s{sX}
    s_and_b32 s{sB}, s{sJ}, 1
    s_lshl_b32 s{sB}, s{sB}, 3
    s_mul_i32 s{sA}, s{sA}, 20480
    v_add_u32 v2, s{sB}, v{vTAU}
    v_mul_u32_u24 v{vQ}, 1280, v2
    v_lshlrev_b32 v3, 3, v{vHL}
    v_add3_u32 v{vQ}, v{vQ}, v3, s{sA}
    s_add_u32 s{sA}, s{sA}, {W_Y}
    v_lshlrev_b32 v{vYA}, 7, v{vHL}
    v_lshl_add_u32 v{vYA}, v2, 3, v{vYA}
    v_add_u32 v{vYA}, s{sA}, v{vYA}
    ''')
    A.vm_n = 0
    for i in range(5):
        hQ = A.vm(f'buffer_load_dwordx2 {v(QR+2*i,2)}, v{vQ}, {s(R_Q,4)}, 0 offen offset:{256*i}{NT}')
    for i in range(5):
        hW = A.vm(f'buffer_load_dwordx2 {v(WRR+2*i,2)}, v3, {s(R_WR,4)}, 0 offen offset:{256*i}')
    A(f'''
    v_min_u32 v2, 59, v{vL}
    s_mul_i32 s{sA}, s{sW}, 3840
    v_lshlrev_b32 v2, 4, v2
    v_add_u32 v2, s{sA}, v2
    v_add_u32 v{vMG}, {W_MOD}, v2
    v_add_u32 v{vML}, {L_MOD}, v2
    v_lshlrev_b32 v{vMR}, 4, v{vHL}
    v_add_u32 v{vMR}, {L_MOD}, v{vMR}
    v_min_u32 v2, 159, v0
    v_mul_u32_u24 v{vFC}, {FSC}, v2
    v_add_u32 v{vFC}, {W_FLAGC}, v{vFC}
    ''')
    lab = spin_begin('mod')
    for i in range(4):
        A(f'buffer_load_dwordx4 {v(MR+4*i,4)}, v{vMG}, {s(R_WS,4)}, 0 offen offset:{960*i} sc1')
    A(f'buffer_load_dword v{FC}, v{vFC}, {s(R_WS,4)}, 0 offen sc1')
    A.wait0(vm=True)
    A(f'v_xor_b32 v2, s{sTAG}, v{MR}')
    for i in range(1, 16):
        A(f'v_bitop3_b32 v2, v2, v{MR+i}, s{sTAG} bitop3:0xf6')
    A(f'v_and_b32 v2, 0xffff, v2')
    A(f'v_bitop3_b32 v2, v2, v{FC}, s{sT} bitop3:0xf6')
    A(f'v_cmp_ne_u32 vcc, 0, v2')
    spin_end(lab)
    stamp(7)
    for i in range(16):
        A(f'v_and_b32 v{MR+i}, s{sHI}, v{MR+i}')
    for i in range(4):
        A(f'ds_write_b128 v{vML}, {v(MR+4*i,4)} offset:{960*i}')
    for i in range(10):
        unpack(QF + 2 * i, QR + i)
    sum20(X0, QF, T0)
    red32([X0], X0 + 2)
    A(f'v_mul_f32 v{X0}, {hexf(1/640)}, v{X0}')
    A.wait0(lg=True)
    A('s_barrier')
    A.lg_n = 0
    hm = {}
    for seg, dst in ((1, T1), (0, T0), (2, T2), (4, C1), (3, SB), (5, GB)):
        for i in range(5):
            hm[seg] = A.lg(f'ds_read_b128 {v(dst+4*i,4)}, v{vMR} offset:{2560*seg+512*i}')
    for i in range(10):
        A(f'v_pk_add_f32 {v(GH+2*i,2)}, {v(QF+2*i,2)}, {v(X0,2)} op_sel_hi:[1,0] neg_lo:[0,1] neg_hi:[0,1]')
    dots20([(X0 + 2, GH, GH, X0 + 4)])
    red32([X0 + 2], X0 + 4)
    A(f'v_mov_b32 v{X0+4}, {hexf(1e-5)}')
    A(f'v_fmac_f32 v{X0+4}, {hexf(1/640)}, v{X0+2}')
    A(f'v_rsq_f32 v{X0+2}, v{X0+4}')
    for i in range(10):
        unpack(CW + 2 * i, WRR + i)
    A.wait0(lg=True)
    for i in range(10):
        A(f'v_pk_fma_f32 {v(T1+2*i,2)}, {v(T1+2*i,2)}, {v(X0+2,2)}, {v(X0+2,2)} op_sel_hi:[1,0,0]')
    for i in range(10):
        A(f'v_pk_fma_f32 {v(GH+2*i,2)}, {v(GH+2*i,2)}, {v(T1+2*i,2)}, {v(T0+2*i,2)}')
    for i in range(10):
        A(f'v_pk_mul_f32 {v(GH+2*i,2)}, {v(GH+2*i,2)}, {v(T2+2*i,2)}')
    vC2 = X0 + 8
    dots20([(vC2, SB, CW, X0 + 4)])
    for i in range(10):
        A(f'v_pk_add_f32 {v(C1+2*i,2)}, {v(C1+2*i,2)}, 1.0 op_sel_hi:[1,0]')
    for i in range(10):
        A(f'v_pk_mul_f32 {v(CW+2*i,2)}, {v(CW+2*i,2)}, {v(C1+2*i,2)}')
    red32([vC2], X0 + 4)
    vSC, vID = 12, 13
    A(f'''
    v_lshlrev_b32 v{vSC}, 2, v{vTAU}
    v_add_u32 v{vSC}, {L_SCR}, v{vSC}
    s_lshl_b32 s{sA}, s2, 3
    v_add_u32 v{vID}, s{sA}, v{vTAU}
    v_mov_b32 v14, {L_SCR}
    s_add_u32 s{sA}, s{sA}, {W_KEYS}
    v_mov_b32 v15, s{sA}
    ''')
    stamp(8)
    lab = spin_begin('y')
    for i in range(5):
        A(f'buffer_load_dwordx2 {v(YR+2*i,2)}, v{vYA}, {s(R_WS,4)}, {SOFF[i]} offen sc1')
    A.wait0(vm=True)
    A(f'v_max3_u32 v2, v{YR}, v{YR+1}, v{YR+2}')
    A(f'v_max3_u32 v3, v{YR+3}, v{YR+4}, v{YR+5}')
    A(f'v_max3_u32 v2, v2, v{YR+6}, v{YR+7}')
    A(f'v_max3_u32 v3, v3, v{YR+8}, v{YR+9}')
    A(f'v_max_u32 v2, v2, v3')
    A(f'v_cmp_eq_u32 vcc, -1, v2')
    spin_end(lab)
    stamp(9)
    X1, XC, H2 = T0, T1, T2
    for i in range(10):
        unpack(X1 + 2 * i, YR + i)
    for i in range(10):
        A(f'v_pk_fma_f32 {v(X1+2*i,2)}, {v(X1+2*i,2)}, {v(GH+2*i,2)}, {v(QF+2*i,2)}')
    sum20(X0, X1, H2)
    red32([X0], X0 + 2)
    A(f'v_mul_f32 v{X0}, {hexf(1/640)}, v{X0}')
    for i in range(10):
        A(f'v_pk_add_f32 {v(XC+2*i,2)}, {v(X1+2*i,2)}, {v(X0,2)} op_sel_hi:[1,0] neg_lo:[0,1] neg_hi:[0,1]')
    dots20([(X0 + 2, XC, XC, X0 + 4), (X0 + 3, XC, CW, X0 + 6)])
    red32([X0 + 2, X0 + 3], X0 + 4)
    A(f'''
    v_mov_b32 v{X0+4}, {hexf(1e-5)}
    v_fmac_f32 v{X0+4}, {hexf(1/640)}, v{X0+2}
    v_rsq_f32 v{X0+2}, v{X0+4}
    s_movk_i32 s{sA}, 0xf800
    v_fma_f32 v{X0+3}, v{X0+3}, v{X0+2}, v{vC2}
    v_ashrrev_i32 v2, 31, v{X0+3}
    v_or_b32 v2, 0x80000000, v2
    v_xor_b32 v2, v2, v{X0+3}
    v_and_or_b32 v{vID}, v2, s{sA}, v{vID}
    ds_write_b32 v{vSC}, v{vID}
    ''')
    for i in range(10):
        A(f'v_pk_mul_f32 {v(C1+2*i,2)}, {v(C1+2*i,2)}, {v(X0+2,2)} op_sel_hi:[1,0]')
    A.wait0(lg=True)
    A('s_barrier')
    A('ds_read_b128 v[16:19], v14')
    A('ds_read_b128 v[20:23], v14 offset:16')
    for i in range(10):
        A(f'v_pk_fma_f32 {v(H2+2*i,2)}, {v(XC+2*i,2)}, {v(C1+2*i,2)}, {v(SB+2*i,2)}')
    A(f'v_mov_b32 v3, s{sT}')
    A.wait0(lg=True)
    A(f'''
    v_max3_u32 v2, v16, v17, v18
    v_max3_u32 v19, v19, v20, v21
    v_max3_u32 v2, v2, v22, v23
    v_max_u32 v2, v2, v19
    s_cmp_lg_u32 s{sW}, 0
    s_cbranch_scc1 L_nokey
    s_mov_b64 exec, 1
    buffer_store_dwordx2 v[2:3], v15, {s(R_WS,4)}, 0 offen sc1
    s_mov_b64 exec, -1
    ''')
    A.label('L_nokey')
    stamp(10)
    vRO = 12
    A(f'''
    v_cmp_eq_u32 s[{sC+1}:{sC+2}], v2, v{vID}
    s_mul_i32 s{sA}, s2, 2560
    v_lshlrev_b32 v{vRO}, 4, v{vHL}
    v_add_u32 v{vRO}, s{sA}, v{vRO}
    v_mov_b32 v3, s{sTAG}
    s_cmp_eq_u64 s[{sC+1}:{sC+2}], 0
    s_cbranch_scc1 L_norow
    s_mov_b64 exec, s[{sC+1}:{sC+2}]
    s_mov_b32 s{sA}, {W_ROWS}
    ''')
    for i in range(5):
        for k in range(2):
            A(f'v_cvt_pk_bf16_f32 v2, v{H2+4*i+2*k}, v{H2+4*i+2*k+1}')
            A(f'v_lshl_or_b32 v{16+4*i+2*k}, v2, 16, v3')
            A(f'v_and_or_b32 v{17+4*i+2*k}, v2, s{sHI}, v3')
        A(f'buffer_store_dwordx4 {v(16+4*i,4)}, v{vRO}, {s(R_WS,4)}, s{sA} offen offset:{512*i} sc1')
    A('s_mov_b64 exec, -1')
    A.label('L_norow')
    for i in range(10):
        A(f'v_pk_fma_f32 {v(X1+2*i,2)}, {v(GB+2*i,2)}, {v(H2+2*i,2)}, {v(X1+2*i,2)}')
    for i in range(5):
        A(f'v_cvt_pk_bf16_f32 v{40+2*i}, v{X1+4*i}, v{X1+4*i+1}')
        A(f'v_cvt_pk_bf16_f32 v{41+2*i}, v{X1+4*i+2}, v{X1+4*i+3}')
        A(f'buffer_store_dwordx2 {v(40+2*i,2)}, v{vQ}, {s(R_OUT,4)}, 0 offen offset:{256*i} sc1')
    A(f'''
    s_cmp_eq_u64 s[{sC+1}:{sC+2}], 0
    s_cbranch_scc1 L_nobase
    s_mov_b64 exec, s[{sC+1}:{sC+2}]
    s_movk_i32 s{sB}, 0xff
    s_mov_b32 s{sA}, {W_BASE}
    ''')
    for i in range(20):
        A(f'v_bfi_b32 v{X1+i}, s{sB}, v3, v{X1+i}')
    A.wait0(vm=True)
    for i in range(5):
        A(f'buffer_store_dwordx4 {v(X1+4*i,4)}, v{vRO}, {s(R_WS,4)}, s{sA} offen offset:{512*i} sc1')
    A('s_mov_b64 exec, -1')
    A.label('L_nobase')
    stamp(11)
    A(f'''
    s_sub_u32 s{sA}, s{sROLE}, 1
    s_cmp_ge_u32 s{sA}, 2
    s_cbranch_scc1 L_fin
    ''')

    vXW, vXR = 6, 7
    A(f'''
    v_lshlrev_b32 v4, 4, v{vL}
    s_mov_b32 s{sB}, {W_KEYS}
    s_mul_i32 s{sA}, s{sW}, {XAW}
    s_add_u32 s{sA}, s{sA}, {L_XA}
    v_lshrrev_b32 v{vXR}, 4, v{vL}
    v_lshlrev_b32 v{vXR}, 4, v{vXR}
    v_add_u32 v{vXR}, s{sA}, v{vXR}
    ''')
    quadpos(vXW, vL, 2)
    A(f'v_and_b32 v8, 255, v{vXW}')
    A(f'v_add_u32 v{vXW}, s{sA}, v{vXW}')
    A(f'v_add_u32 v8, s{sA}, v8')
    lab = spin_begin('key')
    A(f'buffer_load_dwordx4 v[16:19], v4, {s(R_WS,4)}, s{sB} offen sc1')
    A(f'buffer_load_dwordx4 v[20:23], v4, {s(R_WS,4)}, s{sB} offen offset:1024 sc1')
    A.wait0(vm=True)
    A(f'''
    v_xor_b32 v2, s{sT}, v17
    v_bitop3_b32 v2, v2, v19, s{sT} bitop3:0xf6
    v_bitop3_b32 v2, v2, v21, s{sT} bitop3:0xf6
    v_bitop3_b32 v2, v2, v23, s{sT} bitop3:0xf6
    v_max3_u32 v3, v16, v18, v20
    v_cmp_ne_u32 vcc, 0, v2
    v_max_u32 v3, v3, v22
    ''')
    spin_end(lab)
    for sh in (8, 4, 2, 1):
        A.nop(2)
        A(f'v_max_u32_dpp v3, v3, v3 row_ror:{sh} row_mask:0xf bank_mask:0xf')
    A(f'''
    s_nop 0
    v_readlane_b32 s{sKEY}, v3, 0
    v_readlane_b32 s{sA}, v3, 16
    v_readlane_b32 s{sB}, v3, 32
    v_readlane_b32 s{sC}, v3, 48
    s_max_u32 s{sKEY}, s{sKEY}, s{sA}
    s_max_u32 s{sB}, s{sB}, s{sC}
    s_max_u32 s{sKEY}, s{sKEY}, s{sB}
    s_bfe_u32 s{sSLOT}, s{sKEY}, 0x80003
    s_mul_i32 s{sE}, s{sSLOT}, 2560
    ''')
    stamp(12)
    A(f's_cmp_eq_u32 s{sROLE}, 2')
    A('s_cbranch_scc1 L_f2')

    A(f'''
    s_add_u32 s{sE}, s{sE}, {W_ROWS}
    v_and_b32 v5, 511, v4
    ''')
    lab = spin_begin('row')
    A(f'buffer_load_dwordx4 v[16:19], v4, {s(R_WS,4)}, s{sE} offen sc1')
    A(f'buffer_load_dwordx4 v[20:23], v4, {s(R_WS,4)}, s{sE} offen offset:1024 sc1')
    A(f'buffer_load_dwordx4 v[24:27], v5, {s(R_WS,4)}, s{sE} offen offset:2048 sc1')
    A.wait0(vm=True)
    for i in range(3):
        A(f'v_perm_b32 v{28+2*i}, v{17+4*i}, v{16+4*i}, s{sPHI}')
        A(f'v_perm_b32 v{29+2*i}, v{19+4*i}, v{18+4*i}, s{sPHI}')
        A(f'ds_write_b64 v{vXW if i < 2 else 8}, {v(28+2*i,2)} offset:{512*i}')
    A(f'v_xor_b32 v2, s{sTAG}, v16')
    for r in (19, 20, 23, 24, 27):
        A(f'v_bitop3_b32 v2, v2, v{r}, s{sTAG} bitop3:0xf6')
    A('v_and_b32 v2, 0xffff, v2')
    A('v_cmp_ne_u32 vcc, 0, v2')
    spin_end(lab)

    def gemv(n):
        A.wait0(lg=True)
        A.lg_n = 0
        h = []
        for q in range(n):
            h.append(A.lg(f'ds_read_b128 {v(64+4*q,4)}, v{vXR} offset:{64*q}'))
            if q >= 8:
                A.wait(lg=h[q - 8])
                A(f'v_mfma_f32_16x16x32_bf16 v[40:43], {v(64+4*(q-8),4)}, {a_(4*(q-8),4)}, {"0" if q == 8 else "v[40:43]"}')
        for q in range(n - 8, n):
            A.wait(lg=h[q])
            A(f'v_mfma_f32_16x16x32_bf16 v[40:43], {v(64+4*q,4)}, {a_(4*q,4)}, v[40:43]')

    stamp(13)
    gemv(20)
    A(f'''
    s_lshl_b32 s{sA}, s{sF}, 7
    s_lshl_b32 s{sB}, s{sW}, 5
    s_add_u32 s{sA}, s{sA}, s{sB}
    s_add_u32 s{sA}, s{sA}, {W_HID}
    v_lshlrev_b32 v2, 2, v{vL}
    v_mov_b32 v3, s{sTAG}
    s_nop 1
    v_mul_f32 v44, 0xbfb8aa3b, v40
    v_exp_f32 v44, v44
    v_mul_f32_dpp v45, v41, v40 row_ror:8 row_mask:0xf bank_mask:0xf
    v_add_f32 v44, 1.0, v44
    v_rcp_f32 v44, v44
    s_mov_b64 exec, 0xff
    v_mul_f32 v44, v44, v45
    v_cvt_pk_bf16_f32 v44, v44, v44
    v_and_or_b32 v44, v44, s{sHI}, v3
    buffer_store_dword v44, v2, {s(R_WS,4)}, s{sA} offen sc1
    s_mov_b64 exec, -1
    ''')
    stamp(14)
    A('s_branch L_fin')

    A.label('L_f2')
    A(f'''
    s_lshl_b32 s{sA}, s{sF}, 6
    s_add_u32 s{sE}, s{sE}, s{sA}
    s_add_u32 s{sE}, s{sE}, {W_BASE}
    v_and_b32 v9, 15, v{vL}
    v_lshlrev_b32 v10, 2, v9
    s_add_u32 s{sA}, s{sA}, {L_MOD+5*2560}
    v_add_u32 v2, s{sA}, v10
    ds_read_b32 v50, v2
    s_mul_i32 s{sD_}, s{sW}, 1792
    s_add_u32 s{sD_}, s{sD_}, {W_HID}
    s_cmp_eq_u32 s{sW}, 3
    s_cselect_b32 s{sA}, 31, 47
    v_min_u32 v5, s{sA}, v{vL}
    v_lshlrev_b32 v5, 4, v5
    s_or_b32 s{sA}, s{sF}, s{sW}
    s_cmp_lg_u32 s{sA}, 0
    s_cbranch_scc1 L_noepoch
    v_mov_b32 v2, {W_EPOCH}
    v_mov_b32 v3, s{sT}
    s_mov_b64 exec, 1
    buffer_store_dword v3, v2, {s(R_WS,4)}, 0 offen sc1
    s_mov_b64 exec, -1
    ''')
    A.label('L_noepoch')
    A(f'''
    s_ashr_i32 s{sA}, s{sKEY}, 31
    s_not_b32 s{sA}, s{sA}
    s_or_b32 s{sA}, s{sA}, 0x80000000
    s_xor_b32 s{sA}, s{sA}, s{sKEY}
    v_mov_b32 v51, 0xbfb8aa3b
    v_mul_f32 v51, s{sA}, v51
    v_exp_f32 v51, v51
    s_lshr_b32 s{sA}, s{sSLOT}, 4
    v_add_f32 v51, 1.0, v51
    v_rcp_f32 v51, v51
    s_lshl_b32 s{sA}, s{sA}, 3
    s_and_b32 s{sB}, s{sSLOT}, 7
    s_add_u32 s{sA}, s{sA}, s{sB}
    s_lshl_b32 s{sA}, s{sA}, 4
    s_and_b32 s{sB}, s{sSLOT}, 8
    s_add_u32 s{sA}, s{sA}, s{sB}
    s_and_b32 s{sB}, s{sKEY}, 7
    s_add_u32 s{sA}, s{sA}, s{sB}
    s_mul_i32 s{sA}, s{sA}, 1280
    s_lshl_b32 s{sB}, s{sF}, 5
    s_add_u32 s{sSLOT}, s{sA}, s{sB}
    v_lshlrev_b32 v11, 1, v9
    s_lshl_b32 s{sA}, s{sW}, 6
    s_add_u32 s{sA}, s{sA}, {L_SCR+64}
    v_add_u32 v12, s{sA}, v10
    v_add_u32 v13, {L_SCR+64}, v10
    ''')
    A.wait0(lg=True)
    A('v_mul_f32 v51, v51, v50')
    lab = spin_begin('hid')
    A(f'buffer_load_dword v52, v10, {s(R_WS,4)}, s{sE} offen sc1')
    A(f'buffer_load_dwordx4 v[16:19], v4, {s(R_WS,4)}, s{sD_} offen sc1')
    A(f'buffer_load_dwordx4 v[20:23], v5, {s(R_WS,4)}, s{sD_} offen offset:1024 sc1')
    A.wait0(vm=True)
    for i in range(2):
        A(f'v_perm_b32 v{28+2*i}, v{17+4*i}, v{16+4*i}, s{sPHI}')
        A(f'v_perm_b32 v{29+2*i}, v{19+4*i}, v{18+4*i}, s{sPHI}')
        A(f'ds_write_b64 v{vXW}, {v(28+2*i,2)} offset:{512*i}')
    A(f'v_xor_b32 v2, s{sTAG}, v52')
    A('v_and_b32 v2, 0xff, v2')
    for r in range(16, 24):
        A(f'v_bitop3_b32 v2, v2, v{r}, s{sTAG} bitop3:0xf6')
    A('v_and_b32 v2, 0xffff, v2')
    A('v_cmp_ne_u32 vcc, 0, v2')
    spin_end(lab)
    stamp(13)
    gemv(14)
    A.nop(8)
    A('ds_write_b32 v12, v40')
    A.wait0(lg=True)
    A(f'''
    s_barrier
    s_cmp_lg_u32 s{sW}, 0
    s_cbranch_scc1 L_fin
    ds_read2_b32 v[44:45], v13 offset0:0 offset1:16
    ds_read2_b32 v[46:47], v13 offset0:32 offset1:48
    v_and_b32 v52, 0xffffff00, v52
    s_waitcnt lgkmcnt(0)
    v_add_f32 v44, v44, v45
    v_add_f32 v46, v46, v47
    v_add_f32 v44, v44, v46
    v_fma_f32 v44, v44, v51, v52
    v_cvt_pk_bf16_f32 v44, v44, v44
    s_mov_b64 exec, 0xffff
    buffer_store_short v44, v11, {s(R_OUT,4)}, s{sSLOT} offen sc1
    s_mov_b64 exec, -1
    ''')
    stamp(14)
    A.label('L_fin')
    if opt.get('leak') is not None:
        A.wait0(vm=True)
        stamp(15)
        A.nop(2)
        A(f'v_readlane_b32 s{sA}, v{vSTAMP}, 0')
        A(f'v_readlane_b32 s{sB}, v{vSTAMP}, {opt["leak"]}')
        A(f's_cmp_eq_u32 s{sB}, 0')
        A(f's_cselect_b32 s{sB}, s{sA}, s{sB}')
        A(f's_sub_u32 s{sB}, s{sB}, s{sA}')
        if opt.get('diag') is not None:
            A(f's_mov_b32 s{sB}, s89')
        A(f's_min_u32 s{sB}, s{sB}, 10000')
        A(f's_mul_i32 s{sB}, s{sB}, 10')
        A(f's_add_u32 s{sB}, s{sB}, 6000')
        A.label('L_leak')
        A(f's_memrealtime {s(sST,2)}')
        A.wait0(lg=True)
        A(f's_sub_u32 s{sC}, s{sST}, s{sA}')
        A(f's_cmp_lt_u32 s{sC}, s{sB}')
        A('s_cbranch_scc1 L_leak')
    elif stamps:
        A.wait0(vm=True)
        stamp(15)
        A(f'''
        s_lshl_b32 s{sA}, s2, 2
        s_add_u32 s{sA}, s{sA}, s{sW}
        s_lshl_b32 s{sA}, s{sA}, 8
        s_add_u32 s{sA}, s{sA}, {W_STAMP}
        v_lshlrev_b32 v2, 2, v{vL}
        buffer_store_dword v{vSTAMP}, v2, {s(R_WS,4)}, s{sA} offen
        ''')
    A.label('L_end')
    A('s_endpgm')
    return A


def hexf(x):
    import struct
    return hex(struct.unpack('<I', struct.pack('<f', x))[0])


def build(opt):
    A = gen(opt)
    errs = []
    for e in errs:
        print('CHECK:', e, file=sys.stderr)
    ref = open(f'cdna_kernels/{NAME}.s.ref').read().split('\n')
    head = [ln for ln in ref if ln.startswith(';') and '@launch' not in ln and 'Override' not in ln and 'grid=ceil' not in ln]
    k = NAME + '_kernel'
    txt = '\n'.join(head) + f'''
; @launch grid=(256,1,1) block=(256,1,1) lds={L_TOTAL}
.amdgcn_target "amdgcn-amd-amdhsa--gfx950"
.text
.globl {k}
.p2align 8
.type {k},@function
{k}:
''' + A.text() + f'''.section .rodata,"a"
.p2align 6
.amdhsa_kernel {k}
  .amdhsa_next_free_vgpr 512
  .amdhsa_next_free_sgpr 102
  .amdhsa_accum_offset 256
  .amdhsa_group_segment_fixed_size 0
  .amdhsa_kernarg_size 128
  .amdhsa_user_sgpr_count 2
  .amdhsa_user_sgpr_kernarg_segment_ptr 1
  .amdhsa_system_sgpr_workgroup_id_x 1
  .amdhsa_float_denorm_mode_32 3
.end_amdhsa_kernel
'''
    return txt, errs


if __name__ == '__main__':
    out = sys.argv[1]
    opt = {}
    for a in sys.argv[2:]:
        k_, val = a.split('=')
        opt[k_] = int(val)
    txt, errs = build(opt)
    open(out, 'w').write(txt)
    sys.exit(1 if errs else 0)
```

```python
import re

class Asm:
    def __init__(self):
        self.lines = []
        self.vm_n = 0
        self.lg_n = 0
        self.uid = 0
    def __call__(self, s):
        for ln in s.strip().split('\n'):
            ln = ln.strip()
            if ln:
                self.lines.append(ln)
    def label(self, name):
        self.lines.append(name + ':')
    def newlabel(self, base):
        self.uid += 1
        return f'L_{base}_{self.uid}'
    def vm(self, s):
        self(s); self.vm_n += 1
        return self.vm_n
    def lg(self, s):
        self(s); self.lg_n += 1
        return self.lg_n
    def wait(self, vm=None, lg=None):
        parts = []
        if vm is not None:
            n = self.vm_n - vm
            assert 0 <= n, n
            parts.append(f'vmcnt({min(n,63)})')
        if lg is not None:
            n = self.lg_n - lg
            assert 0 <= n, n
            parts.append(f'lgkmcnt({min(n,15)})')
        self('s_waitcnt ' + ' '.join(parts))
    def wait0(self, vm=False, lg=False):
        parts = []
        if vm: parts.append('vmcnt(0)')
        if lg: parts.append('lgkmcnt(0)')
        self('s_waitcnt ' + ' '.join(parts))
    def nop(self, n):
        while n > 0:
            k = min(n, 16)
            self(f's_nop {k-1}')
            n -= k
    def text(self):
        out = []
        for ln in self.lines:
            out.append(ln if ln.endswith(':') else '    ' + ln)
        return '\n'.join(out) + '\n'

def v(a, n=1):
    return f'v{a}' if n == 1 else f'v[{a}:{a+n-1}]'
def a_(a, n=1):
    return f'a{a}' if n == 1 else f'a[{a}:{a+n-1}]'
def s(a, n=1):
    return f's{a}' if n == 1 else f's[{a}:{a+n-1}]'

_R = re.compile(r'^-?\|?(?:abs\()?([vas])(\d+)\)?\|?$')
_RR = re.compile(r'^-?([vas])\[(\d+):(\d+)\]$')
def regs(tok):
    tok = tok.strip()
    m = _R.match(tok)
    if m: return {(m.group(1), int(m.group(2)))}
    m = _RR.match(tok)
    if m: return {(m.group(1), i) for i in range(int(m.group(2)), int(m.group(3)) + 1)}
    if tok == 'vcc': return {('s', 'vcc')}
    if tok in ('vcc_lo', 'vcc_hi'): return {('s', 'vcc')}
    if tok in ('exec', 'exec_lo', 'exec_hi'): return {('s', 'exec')}
    if tok == 'm0': return {('s', 'm0')}
    return set()

TRANS = ('v_exp_f32', 'v_log_f32', 'v_rcp_f32', 'v_rsq_f32', 'v_sqrt_f32', 'v_sin_f32', 'v_cos_f32')

class Ins:
    def __init__(self, text):
        self.text = text
        t = text.split(';')[0].strip()
        sp = t.split(None, 1)
        self.op = op = sp[0]
        rest = sp[1] if len(sp) > 1 else ''
        ops = [x.strip() for x in re.split(r',(?![^\[]*\])', rest)] if rest else []
        mods = ''
        if ops:
            last = ops[-1].split(None, 1)
            ops[-1] = last[0]
            mods = last[1] if len(last) > 1 else ''
        self.ops, self.mods = ops, mods
        self.w, self.r = set(), set()
        self.kind = 'other'
        self.dpp = 'row_' in mods or 'wave_' in mods or 'quad_perm' in mods
        R = [regs(o) for o in ops]
        allr = lambda xs: set().union(*xs) if xs else set()
        if op.startswith('v_mfma'):
            self.kind = 'mfma'; self.w = R[0]; self.r = allr(R[1:]); self.ab = R[1] | R[2]; self.c = R[3]
            self.passes = 4 if '16x16x32' in op else 8
        elif op.startswith('v_'):
            self.kind = 'valu'
            self.w = set(R[0]); self.r = allr(R[1:])
            if 'permlane' in op and 'swap' in op:
                self.w = R[0] | R[1]; self.r = R[0] | R[1]
            if op.startswith(('v_fmac', 'v_dot2c', 'v_pk_fmac', 'v_writelane')) or self.dpp:
                self.r |= R[0]
            if op.startswith(('v_add_co', 'v_sub_co', 'v_addc_co', 'v_subb_co')):
                self.w |= R[1]; self.r = allr(R[2:])
            if op.startswith('v_cmpx'): self.w |= {('s', 'exec')}
        elif op.startswith('ds_'):
            self.kind = 'ds'
            if op.startswith(('ds_read', 'ds_bpermute', 'ds_permute', 'ds_swizzle')) or '_rtn' in op:
                self.w = R[0]; self.r = allr(R[1:])
            else:
                self.r = allr(R)
        elif op.startswith(('buffer_', 'global_')):
            self.kind = 'vm'
            self.lds = ' lds' in (' ' + mods) or 'load_lds' in op
            if op in ('buffer_wbl2', 'buffer_inv'):
                pass
            elif 'load' in op and not self.lds:
                self.w = R[0]; self.r = allr(R[1:])
            elif 'atomic' in op and 'sc0' in mods:
                self.w = R[0]; self.r = allr(R)
            else:
                self.r = allr(R)
            if self.lds: self.r |= {('s', 'm0')}
            self.wide = set()
            if 'store' in op and ('x3' in op or 'x4' in op):
                self.wide = R[0] if op.startswith('buffer') else R[1]
        elif op.startswith(('s_load', 's_memrealtime', 's_memtime', 's_buffer_load')):
            self.kind = 'smem'; self.w = R[0]; self.r = allr(R[1:])
        elif op == 's_waitcnt':
            self.kind = 'wait'
            m = re.search(r'vmcnt\((\d+)\)', t); self.vmc = int(m.group(1)) if m else None
            m = re.search(r'lgkmcnt\((\d+)\)', t); self.lgc = int(m.group(1)) if m else None
        elif op == 's_nop':
            self.kind = 'nop'; self.n = int(ops[0], 0) + 1
        elif op.startswith(('s_branch', 's_cbranch')):
            self.kind = 'br'; self.target = ops[0]
        elif op == 's_endpgm':
            self.kind = 'end'
        elif op.startswith('s_'):
            self.kind = 'salu'
            if op.startswith(('s_cmp', 's_bitcmp', 's_barrier', 's_sleep', 's_setprio', 's_setreg')):
                self.r = allr(R)
            else:
                self.w = set(R[0]) if R else set(); self.r = allr(R[1:])
                if 'saveexec' in op: self.w |= {('s', 'exec')}
                if op.startswith(('s_addk', 's_mulk', 's_bitset')): self.r |= R[0]

def need_states(p, c):
    n = 0
    vw = {x for x in p.w if x[0] in 'va'}
    sw = {x for x in p.w if x[0] == 's'}
    if p.kind == 'valu':
        if c.kind == 'mfma' and vw & c.r: n = max(n, 2)
        if c.kind == 'valu' and c.dpp and vw & c.r: n = max(n, 2)
        if c.kind == 'valu' and 'permlane' in c.op and vw & c.r: n = max(n, 2)
        if c.kind == 'valu' and c.op.startswith(('v_readlane', 'v_readfirstlane')) and vw & c.r: n = max(n, 1)
        if p.op.startswith(TRANS) and c.kind in ('valu', 'mfma') and vw & c.r: n = max(n, 1)
        if sw:
            if c.kind == 'valu' and sw & c.r:
                n = max(n, 4 if c.op.startswith(('v_readlane', 'v_writelane')) else 2)
            if c.kind == 'vm' and sw & c.r: n = max(n, 5)
    if p.kind == 'mfma':
        k = {4: 8, 8: 12}[p.passes]
        if c.kind == 'mfma':
            if p.w & c.ab: n = max(n, k)
            if p.w & c.c and p.w != c.c: n = max(n, k - 2)
            if p.w & c.w and p.w != c.c: n = max(n, k - 2)
        elif c.kind in ('valu', 'ds', 'vm') and p.w & (c.r | c.w): n = max(n, k)
        if c.kind == 'valu' and p.c & c.w: n = max(n, {4: 3, 8: 7}[p.passes])
    if p.kind == 'vm' and getattr(p, 'wide', None):
        if c.kind in ('valu', 'mfma') and p.wide & c.w: n = max(n, 2)
        elif p.wide & c.w: n = max(n, 1)
    if p.kind == 'salu' and ('s', 'm0') in p.w and c.kind == 'vm' and c.lds: n = max(n, 1)
    return n

M32 = 0xffffffff
def _val(tok, env):
    tok = tok.strip()
    m = re.match(r'^s(\d+)$', tok)
    if m: return env.get(int(m.group(1)))
    if tok == 'm0': return env.get('m0')
    try:
        return int(tok, 0) & M32
    except ValueError:
        return None

def _sx(x): return x - (1 << 32) if x & 0x80000000 else x

def salu_step(ins, env):
    op, ops = ins.op, ins.ops
    def dst():
        m = re.match(r'^s(\d+)$', ops[0])
        return int(m.group(1)) if m else ('m0' if ops[0] == 'm0' else None)
    a = _val(ops[1], env) if len(ops) > 1 else None
    b = _val(ops[2], env) if len(ops) > 2 else None
    res, scc, setscc = None, None, True
    if op.startswith('s_cmp_') and op.endswith('32'):
        x, y = _val(ops[0], env), a
        if x is not None and y is not None:
            if op.endswith('i32'): x, y = _sx(x), _sx(y)
            k = op.split('_')[2]
            scc = {'eq': x == y, 'lg': x != y, 'lt': x < y, 'le': x <= y, 'gt': x > y, 'ge': x >= y}[k]
        env['scc'] = scc
        return
    if op.startswith(('s_cmp', 's_bitcmp')):
        x = _val(ops[0], env)
        if op == 's_bitcmp1_b32' and x is not None and a is not None: scc = bool((x >> a) & 1)
        env['scc'] = scc
        return
    if op.startswith(('s_barrier', 's_sleep', 's_setprio', 's_setreg')): return
    if ops and ops[0].startswith('exec'):
        env['ez'] = (op == 's_mov_b64' and ops[1].strip() == '0')
    both = a is not None and b is not None
    if op == 's_mov_b32': res, setscc = a, False
    elif op == 's_movk_i32': res, setscc = ((a & 0xffff) - (0x10000 if a & 0x8000 else 0)) & M32, False
    elif op == 's_mul_i32': res, setscc = ((a * b) & M32 if both else None), False
    elif op == 's_cselect_b32':
        c = env.get('scc'); setscc = False
        res = (a if c else b) if c is not None else (a if a == b else None)
    elif op in ('s_mov_b64', 's_cselect_b64', 's_getpc_b64', 's_getreg_b32', 's_ff1_i32_b64'): setscc = False
    elif both:
        if op == 's_add_u32': res, scc = (a + b) & M32, a + b > M32
        elif op == 's_sub_u32': res, scc = (a - b) & M32, b > a
        elif op == 's_lshl_b32': res = (a << (b & 31)) & M32; scc = res != 0
        elif op == 's_lshr_b32': res = a >> (b & 31); scc = res != 0
        elif op == 's_and_b32': res = a & b; scc = res != 0
        elif op == 's_or_b32': res = a | b; scc = res != 0
        elif op == 's_xor_b32': res = a ^ b; scc = res != 0
        elif op == 's_min_u32': res, scc = min(a, b), a < b
        elif op == 's_max_u32': res, scc = max(a, b), a > b
    for r in ins.w:
        if r[0] == 's': env.pop(r[1], None)
    d = dst()
    if d is not None and res is not None: env[d] = res
    if setscc: env['scc'] = scc

def check(lines, cases=((0, 0),), wave_sgpr=None, unknown=(), maxstates=400000):
    prog, labels = [], {}
    for ln in lines:
        if ln.endswith(':'):
            labels[ln[:-1]] = len(prog)
        elif ln.startswith(('.', ';')):
            continue
        else:
            prog.append(Ins(ln))
    errs = {}
    labpcs = set(labels.values())
    covered = set()
    bars = {}
    for (wg, wave) in cases:
        seen = set()
        stack = [(0, (), (), (), {2: wg}, 0)]
        nst = 0
        while stack:
            pc, vmq, lgq, win, env, nb = stack.pop()
            env = dict(env)
            while True:
                ins = prog[pc]
                covered.add(pc)
                if ins.kind == 'br' or pc in labpcs:
                    key = (pc, vmq, lgq, win, tuple(sorted(env.items(), key=str)), nb)
                    if key in seen: break
                    seen.add(key); nst += 1
                    if nst > maxstates: raise RuntimeError('too many states')
                touched = ins.r | ins.w
                for q in vmq:
                    if q >= 0 and prog[q].w & touched:
                        errs.setdefault(('vm', q), f'wg{wg} w{wave}: pending vm load [{prog[q].text}] touched by [{ins.text}] @{pc}')
                for q in lgq:
                    if prog[q].w & touched:
                        errs.setdefault(('lg', q), f'wg{wg} w{wave}: pending lgkm load [{prog[q].text}] touched by [{ins.text}] @{pc}')
                for (q, d) in win:
                    k = need_states(prog[q], ins)
                    if d < k:
                        errs.setdefault(('hz', q, pc), f'hazard need {k} have {d}: [{prog[q].text}] -> [{ins.text}] @{pc}')
                step = ins.n if ins.kind == 'nop' else 1
                win = tuple((q, d + step) for (q, d) in win if d + step < 12)
                if ins.kind in ('valu', 'mfma', 'vm', 'salu') and (ins.kind != 'salu' or ('s', 'm0') in ins.w):
                    win = win + ((pc, 0),)
                if ins.kind == 'salu':
                    salu_step(ins, env)
                    for u in unknown:
                        if u in env: del env[u]
                    if ins.op == 's_barrier': nb += 1
                else:
                    for r in ins.w:
                        if r[0] == 's': env.pop(r[1], None)
                    if ins.op == 'v_readfirstlane_b32' and ('s', wave_sgpr) in ins.w: env[wave_sgpr] = wave
                if ins.kind == 'vm':
                    vmq = (vmq + (pc if ins.w else -1,))[-64:]
                elif ins.kind in ('ds', 'smem'):
                    lgq = lgq + (pc,)
                elif ins.kind == 'wait':
                    if ins.vmc is not None:
                        vmq = vmq[len(vmq) - ins.vmc:] if ins.vmc and len(vmq) > ins.vmc else (vmq if ins.vmc else ())
                    if ins.lgc is not None:
                        if ins.lgc == 0: lgq = ()
                        else:
                            if any(prog[q].kind == 'smem' for q in lgq):
                                errs.setdefault(('sm', pc), f'counted lgkmcnt with SMEM outstanding @{pc} [{ins.text}]')
                            if len(lgq) > ins.lgc: lgq = lgq[len(lgq) - ins.lgc:]
                while vmq and vmq[0] < 0: vmq = vmq[1:]
                while lgq and not prog[lgq[0]].w and prog[lgq[0]].kind != 'smem': lgq = lgq[1:]
                if ins.kind == 'end':
                    bars.setdefault(wg, set()).add(nb)
                    break
                if ins.kind == 'br':
                    tgt = labels[ins.target]
                    take = None
                    if ins.op == 's_branch': take = True
                    elif ins.op == 's_cbranch_execz': take = bool(env.get('ez'))
                    elif ins.op in ('s_cbranch_scc0', 's_cbranch_scc1') and env.get('scc') is not None:
                        take = bool(env['scc']) == ins.op.endswith('1')
                    if take is True:
                        pc = tgt; continue
                    if take is None:
                        stack.append((tgt, vmq, lgq, win, dict(env), nb))
                pc += 1
    out = list(errs.values())
    for wg, c in bars.items():
        if len(c) > 1: out.append(f'wg{wg}: waves disagree on barrier count {sorted(c)}')
    miss = [i for i in range(len(prog)) if i not in covered]
    if miss: out.append(f'{len(miss)} instructions never reached, first [{prog[miss[0]].text}] @{miss[0]}')
    return out
```

```python
import sys, struct
from asmlib import Asm, v, a_, s, check

NAME = 'adaLN_cond__ssm_conv_h3__moe_arch_mod__prompt'

W_EPOCH = 0
W_FLAG1 = 0x1000
W_FLAGC = 0x4000
W_KEYS  = 0xA000
W_FWD   = 0xF800
W_MOD   = 0x22000
W_HID   = 0x10000
W_ROWS  = 0x30000
W_BASE  = 0xD0000
W_KVT   = 0x200000
W_Y     = 0x500000
W_STAMP = 0x800000
W_SIZE  = 0x900000

L_KC, KCW, KC1 = 0, 8320, 4160
L_XB, XBW = 33280, 4608
L_YS = 51712
L_MOD = 68096
L_RK, L_RV, RST = 89088, 100240, 656
L_WB1 = 0
L_A = 83456
XAW = 1280
L_SCR = 88576
L_TOTAL = 110848

P_Q, P_K, P_V, P_SH, P_SK, P_SD, P_BX, P_WR = 4, 6, 8, 10, 12, 14, 16, 18
P_WG, P_WU, P_WD, P_C, P_WM, P_OUT, P_DBG, P_WS = 20, 22, 24, 26, 28, 30, 32, 34
R_K, R_V, R_WS, R_Q, R_OUT, R_G1, R_G2, R_SH, R_WR = 36, 40, 44, 48, 52, 56, 60, 64, 68
sG = 3
sX, sJ, sW, sT = 72, 73, 74, 75
sC4, sC8, sC12, sC16, sC5, sC10 = 76, 77, 78, 79, 80, 81
sA, sB, sC, sD_, sE, sH = 82, 83, 84, 85, 86, 87
sSD, sKEY = 88, 89
sSPIN, sHI, sPLO, sPHI, sTAG, sF, sXC, sMI = 90, 91, 92, 93, 94, 95, 96, 97
sST = 98
sLOC, sBLK = 100, 101
zFC, zH8, zQ1, zN2, zBK, zYB, zQB, zQL, zW40, zFL = 36, 37, 38, 39, 40, 41, 42, 43, 64, 66
SOFF = ['0', s(sC4), s(sC8), s(sC12), s(sC16)]
vL = 1
vSTAMP = 255
SPIN = 0x20000
LOG2E_NEG = '0xbfb8aa3b'


def hexf(x):
    return hex(struct.unpack('<I', struct.pack('<f', x))[0])


def gen(opt):
    stamps = opt.get('stamps', 0)
    A = Asm()

    def stamp(k):
        if not stamps or (opt.get('leak') is not None and k != opt['leak']):
            return
        A(f's_memrealtime {s(sST,2)}')
        if opt.get('cyc'):
            A(f's_memtime s[0:1]')
        A.wait0(lg=True)
        A(f'v_writelane_b32 v{vSTAMP}, s{sST}, {k}')
        if opt.get('cyc'):
            A(f'v_writelane_b32 v{vSTAMP}, s0, {k+32}')

    def capture(fn):
        n = len(A.lines)
        fn()
        t = A.lines[n:]
        del A.lines[n:]
        return t

    def srd(r, p, size):
        A(f's_mov_b64 {s(r,2)}, {s(p,2)}')
        A(f's_mov_b32 s{r+2}, {size}')
        A(f's_mov_b32 s{r+3}, 0x20000')

    def spin_begin(name):
        lab = A.newlabel(name)
        A(f's_mov_b32 s{sSPIN}, {SPIN}')
        A.label(lab)
        return lab

    def spin_end(lab):
        ok = lab + '_ok'
        A(f's_cbranch_vccz {ok}')
        A(f's_sub_u32 s{sSPIN}, s{sSPIN}, 1')
        A(f's_cbranch_scc0 {lab}')
        A.label(ok)

    def unpack(dst, src):
        A(f'v_lshlrev_b32 v{dst}, 16, v{src}')
        A(f'v_and_b32 v{dst+1}, s{sHI}, v{src}')

    def red32(rs, tmp, op='add_f32'):
        pad = max(0, 2 - (len(rs) - 1))
        for sh in (8, 4, 2, 1):
            A.nop(pad)
            for r in rs:
                A(f'v_{op}_dpp v{r}, v{r}, v{r} row_ror:{sh} row_mask:0xf bank_mask:0xf')
        for i, r in enumerate(rs):
            A(f'v_mov_b32 v{tmp+i}, v{r}')
        A.nop(pad)
        for i, r in enumerate(rs):
            A(f'v_permlane16_swap_b32 v{tmp+i}, v{r}')
        for i, r in enumerate(rs):
            A(f'v_{op} v{r}, v{tmp+i}, v{r}')

    def sums20(items):
        for i in range(1, 5):
            for (d, x, t) in items:
                for k in (0, 2):
                    first = v(x + k, 2) if i == 1 else v(t + k, 2)
                    A(f'v_pk_add_f32 {v(t+k,2)}, {first}, {v(x+4*i+k,2)}')
        for (d, x, t) in items:
            A(f'v_pk_add_f32 {v(t,2)}, {v(t,2)}, {v(t+2,2)}')
        for (d, x, t) in items:
            A(f'v_add_f32 v{d}, v{t}, v{t+1}')

    def dots20(items):
        for i in range(10):
            for (d, x, y, t) in items:
                if i == 0:
                    A(f'v_pk_mul_f32 {v(t,2)}, {v(x,2)}, {v(y,2)}')
                else:
                    A(f'v_pk_fma_f32 {v(t,2)}, {v(x+2*i,2)}, {v(y+2*i,2)}, {v(t,2)}')
        for (d, x, y, t) in items:
            A(f'v_add_f32 v{d}, v{t}, v{t+1}')

    def quadpos(dst, src, tmp):
        A(f'v_and_b32 v{tmp}, 1, v{src}')
        A(f'v_bfe_u32 v{dst}, v{src}, 1, 1')
        A(f'v_lshl_or_b32 v{dst}, v{tmp}, 1, v{dst}')
        A(f'v_and_b32 v{tmp}, -4, v{src}')
        A(f'v_or_b32 v{dst}, v{tmp}, v{dst}')
        A(f'v_lshlrev_b32 v{dst}, 3, v{dst}')

    def dma_loop(voff, r, n, gstep, lds0, g0):
        lab = A.newlabel('dma')
        A(f's_mov_b32 m0, {lds0}')
        A(f's_mov_b32 s{sA}, {g0}')
        A(f's_mov_b32 s{sB}, {n}')
        A.label(lab)
        A(f'buffer_load_dwordx4 v{voff}, {s(r,4)}, s{sA} offen lds')
        A(f's_add_u32 s{sA}, s{sA}, {gstep}')
        A(f's_add_u32 m0, m0, 1024')
        A(f's_sub_u32 s{sB}, s{sB}, 1')
        A(f's_cmp_lg_u32 s{sB}, 0')
        A(f's_cbranch_scc1 {lab}')

    def tagcheck(acc, regs16, regs32=()):
        A(f'v_xor_b32 v{acc}, s{sTAG}, v{regs16[0]}')
        for r in regs16[1:]:
            A(f'v_bitop3_b32 v{acc}, v{acc}, v{r}, s{sTAG} bitop3:0xf6')
        A(f'v_and_b32 v{acc}, 0xffff, v{acc}')
        for r in regs32:
            A(f'v_bitop3_b32 v{acc}, v{acc}, v{r}, s{sT} bitop3:0xf6')
        A(f'v_cmp_ne_u32 vcc, 0, v{acc}')

    vD, vH, vS, vT, vK, vRD, vFA, vFV = 4, 5, 6, 7, 8, 9, 11, 12
    KR, VR, SR, WF, KF, VF, KS, KO = 16, 38, 54, 64, 80, 124, 156, 188
    FK, FP, FT, vA0, vZ = 204, 220, 224, 240, 244
    vB, vYW, vYR, vYG, vDM, vPL, vAD = 248, 249, 250, 251, 252, 10, 236
    DSO = ['0', s(sC4), s(sC8), s(sC12)]

    A('s_load_dwordx16 s[4:19], s[0:1], 0')
    A('s_load_dwordx16 s[20:35], s[0:1], 64')
    if stamps:
        A(f's_memrealtime {s(sST,2)}')
        A(f'v_mov_b32 v{vSTAMP}, 0')
    A(f"""
    s_cmp_ge_u32 s2, 256
    s_cbranch_scc1 L_end
    v_lshrrev_b32 v2, 6, v0
    v_and_b32 v{vL}, 63, v0
    s_and_b32 s{sA}, s2, 0xf8
    v_readfirstlane_b32 s{sW}, v2
    s_getpc_b64 {s(R_G2,2)}
    """)
    A.label('L_pc')
    A(f"""
    v_add_lshl_u32 v3, v{vL}, s{sA}, 7
    v_add_u32 v3, L_body-L_pc, v3
    v_min_u32 v3, L_end-L_pc, v3
    s_cmp_eq_u32 s{sW}, 3
    s_cbranch_scc0 L_nopf
    s_mov_b64 exec, 0xff
    global_load_dword v254, v3, {s(R_G2,2)}
    s_mov_b64 exec, -1
    """)
    A.label('L_nopf')
    A(f"""
    s_and_b32 s{sX}, s2, 7
    s_lshr_b32 s{sJ}, s2, 3
    s_add_u32 s{sBLK}, s{sJ}, 12
    s_and_b32 s{sBLK}, s{sBLK}, 31
    s_lshl_b32 s{sA}, s{sBLK}, 2
    s_add_u32 s{sA}, s{sA}, s{sW}
    s_mul_i32 s{sA}, s{sA}, 20480
    s_mul_i32 s{sB}, s{sX}, 160
    s_add_u32 s{sA}, s{sA}, s{sB}
    v_mul_u32_u24 v2, 26, v{vL}
    v_lshrrev_b32 v2, 8, v2
    v_mul_u32_u24 v2, 1120, v2
    v_lshl_add_u32 v2, v{vL}, 4, v2
    v_add_u32 v{vD}, s{sA}, v2
    v_subrev_u32 v{vH}, 5120, v{vD}
    v_lshrrev_b32 v3, 3, v0
    s_lshl_b32 s{sB}, s{sB}, 2
    v_lshl_add_u32 v{vS}, v3, 5, s{sB}
    s_movk_i32 s{sC4}, {5120-RST}
    s_movk_i32 s{sC8}, {2*(5120-RST)}
    s_movk_i32 s{sC12}, {3*(5120-RST)}
    s_mov_b32 s{R_K+2}, 2621440
    s_mov_b32 s{R_K+3}, 0x20000
    s_mov_b64 {s(R_V+2,2)}, {s(R_K+2,2)}
    s_mov_b64 {s(R_G1+2,2)}, {s(R_K+2,2)}
    s_movk_i32 s{R_SH+2}, 5120
    s_mov_b32 s{R_SH+3}, 0x20000
    s_mul_i32 s{sG}, s{sX}, 20
    s_add_u32 s{sG}, s{sG}, s{sJ}
    s_lshl_b32 s{sA}, s{sG}, 2
    s_add_u32 s{sA}, s{sA}, s{sW}
    s_lshl_b32 s{sC}, s{sA}, 12
    v_lshl_add_u32 v{vK}, v{vL}, 4, s{sC}
    s_getreg_b32 s{sXC}, hwreg(HW_REG_XCC_ID, 0, 4)
    s_or_b32 s{sXC}, s{sXC}, 0x80
    s_lshl_b32 s{sE}, s{sX}, 5
    s_add_u32 s{sC}, s{sE}, s{sJ}
    v_mov_b32 v12, s{sXC}
    v_mov_b32 v13, s{sC}
    s_mul_i32 s{sH}, s{sW}, {4*RST}
    s_add_u32 s{sH}, s{sH}, {L_RK+RST}
    s_mov_b32 m0, {L_RK}
    s_cmp_lg_u32 s{sW}, 0
    """)
    A.wait0(lg=True)
    A(f"""
    s_mov_b64 {s(R_G1,2)}, {s(P_SK,2)}
    s_mov_b64 {s(R_K,2)}, {s(P_K,2)}
    s_mov_b64 {s(R_V,2)}, {s(P_V,2)}
    s_mov_b64 {s(R_SH,2)}, {s(P_SH,2)}
    s_cbranch_scc1 L_ld_f
    s_mov_b64 exec, 1
    global_store_byte v13, v12, {s(P_DBG,2)}
    global_load_ubyte v253, v13, {s(P_DBG,2)} sc1
    s_mov_b32 exec_lo, -1
    s_mov_b32 exec_hi, 0xff
    buffer_load_dwordx4 v{vH}, {s(R_K,4)}, 0 offen lds
    s_mov_b32 exec_hi, -1
    """)
    A.label('L_ld_f')
    A(f's_cmp_ge_u32 s{sJ}, 20')
    A('s_cbranch_scc1 L_ld_n')
    A.vm_n = 0
    for i in range(4):
        hF = A.vm(f'buffer_load_dwordx4 {v(FK+4*i,4)}, v{vK}, {s(R_G1,4)}, 0 offen offset:{1024*i}')
    A.label('L_ld_n')
    A(f's_mov_b32 m0, s{sH}')
    A('s_mov_b32 exec_hi, 0xff')
    for i in range(4):
        A.vm(f'buffer_load_dwordx4 v{vD}, {s(R_K,4)}, {DSO[i]} offen offset:{RST*i} lds')
    A(f's_add_u32 m0, m0, {L_RV-L_RK-RST}')
    A('s_mov_b32 exec_hi, -1')
    A.vm(f'buffer_load_dwordx4 {v(SR,4)}, v{vS}, {s(R_SH,4)}, 0 offen')
    hS = A.vm(f'buffer_load_dwordx4 {v(SR+4,4)}, v{vS}, {s(R_SH,4)}, 0 offen offset:16')
    A('s_mov_b32 exec_hi, 0xff')
    for i in range(4):
        hV = A.vm(f'buffer_load_dwordx4 v{vD}, {s(R_V,4)}, {DSO[i]} offen offset:{RST*i} lds')
    A('s_mov_b32 exec_hi, -1')
    if stamps:
        A(f'v_writelane_b32 v{vSTAMP}, s{sST}, 0')
    A(f"""
    s_load_dword s{sT}, {s(P_WS,2)}, {W_EPOCH}
    s_min_u32 s{sA}, s{sA}, 639
    s_lshr_b32 s{sA}, s{sA}, 1
    s_lshl_b32 s{sA}, s{sA}, 2
    s_load_dword s{sSD}, {s(P_SD,2)}, s{sA}
    s_branch L_body
    .p2align 12
    """)
    A.label('L_body')
    srd(R_WS, P_WS, W_SIZE)
    A(f"""
    v_add_u32 v{vDM}, {W_KVT}, v{vK}
    s_mul_i32 s{sA}, s{sX}, 3
    s_lshr_b32 s{sC}, s{sJ}, 3
    s_add_u32 s{sC}, s{sA}, s{sC}
    s_lshl_b32 s{sC}, s{sC}, 7
    s_add_u32 s{sC}, s{sC}, {W_FLAG1}
    v_and_b32 v2, 31, v{vL}
    v_lshl_add_u32 v{vPL}, v2, 2, s{sC}
    v_mul_u32_u24 v2, 112, v{vL}
    v_add_u32 v{vYR}, v2, v{vDM}
    v_cmp_gt_u32 vcc, 12, v{vL}
    v_add_u32 v63, {12*128}, v{vYR}
    s_cmp_lt_u32 s{sJ}, 20
    s_cselect_b32 s{R_WS+2}, s{R_WS+2}, 0
    v_cndmask_b32 v2, v{vPL}, v{vYR}, vcc
    s_mov_b64 exec, 0x1fff
    """)
    hP = A.vm(f'buffer_load_dword v62, v2, {s(R_WS,4)}, 0 offen sc1')
    A('s_mov_b64 exec, -1')
    A(f's_mov_b32 s{R_WS+2}, {W_SIZE}')
    for r, c in ((sC4, 4096), (sC8, 8192), (sC12, 12288), (sC16, 16384), (sC5, 5120), (sC10, 10240)):
        A(f's_movk_i32 s{r}, {c}')
    for r, c in ((sHI, 0xffff0000), (sPLO, 0x05040100), (sPHI, 0x07060302)):
        A(f's_mov_b32 s{r}, {hex(c)}')
    srd(R_Q, P_Q, 2621440)
    srd(R_OUT, P_OUT, 2621440)
    srd(R_WR, P_WR, 1280)
    A(f"""
    s_mul_i32 s{sXC}, s{sXC}, 0x01010101
    s_mov_b32 s{sXC+1}, s{sXC}
    s_lshl_b32 s{sB}, s{sB}, 9
    s_lshl_b32 s{sC}, s{sBLK}, 7
    s_add_u32 s{sB}, s{sB}, s{sC}
    s_add_u32 s{sB}, s{sB}, {W_KVT}
    v_and_b32 v2, 7, v0
    v_lshlrev_b32 v{vT}, 14, v3
    v_lshl_add_u32 v{vT}, v2, 4, v{vT}
    v_add_u32 v{vT}, s{sB}, v{vT}
    v_mul_u32_u24 v{vRD}, {2*RST}, v2
    v_lshl_add_u32 v{vRD}, v3, 3, v{vRD}
    v_add_u32 v{vRD}, {L_RK}, v{vRD}
    s_add_u32 s{sA}, s{sA}, s{sW}
    s_lshl_b32 s{sA}, s{sA}, 5
    s_add_u32 s{sA}, s{sA}, s{sBLK}
    s_lshl_b32 s{sA}, s{sA}, 2
    s_add_u32 s{sA}, s{sA}, {W_FLAG1}
    v_mov_b32 v{vFA}, s{sA}
    s_lshl_b32 s{sB}, s{sG}, 7
    s_add_u32 s{sB}, s{sB}, {W_Y}
    v_mul_u32_u24 v{vYG}, 20480, v3
    v_lshl_add_u32 v{vYG}, v2, 4, v{vYG}
    v_add_u32 v{vYG}, s{sB}, v{vYG}
    """)
    if opt.get('pads', 1):
        srd(R_G2, P_WM, 4915200)
        A('s_mov_b64 exec, 0')
        for w in range(3):
            A(f's_cmp_eq_u32 s{sW}, {w}')
            A(f's_cbranch_scc1 L_pad{w+1}')
        A('s_branch L_pad4')
        A.label('L_padback')
        A('s_mov_b64 exec, -1')
    A.wait0(lg=True)
    A(f"""
    s_add_u32 s{sT}, s{sT}, 1
    s_and_b32 s{sTAG}, s{sT}, 0xffff
    v_mov_b32 v{vFV}, s{sT}
    s_cmp_ge_u32 s{sJ}, 20
    s_cbranch_scc1 L_nconv
    """)

    A(f"""
    s_mul_i32 s{sA}, s{sW}, {KCW}
    v_lshl_add_u32 v{vK}, v{vL}, 4, s{sA}
    v_mov_b32 v{vZ}, 0
    v_mov_b32 v{vZ+1}, 0
    v_mov_b32 v{vZ+2}, 0
    v_mov_b32 v{vZ+3}, 0
    v_mov_b32 v{FP}, 0
    s_mov_b64 exec, 3
    ds_write_b128 v{vK}, {v(vZ,4)} offset:{L_KC}
    ds_write_b128 v{vK}, {v(vZ,4)} offset:{L_KC+KC1}
    s_mov_b64 exec, -1
    v_and_b32 v2, 15, v{vL}
    v_lshrrev_b32 v3, 4, v{vL}
    v_lshlrev_b32 v4, 3, v3
    v_sub_u32 v4, v2, v4
    v_add_u32 v4, 25, v4
    v_and_b32 v5, 1, v4
    v_mul_u32_u24 v5, {KC1+2}, v5
    v_lshl_add_u32 v5, v4, 1, v5
    v_add_u32 v{vA0}, s{sA}, v5
    v_add_u32 v{vA0+1}, 1024, v{vA0}
    v_add_u32 v{vA0+2}, 2048, v{vA0}
    v_add_u32 v{vA0+3}, 3072, v{vA0}
    s_mul_i32 s{sA}, s{sW}, {XBW}
    s_add_u32 s{sA}, s{sA}, {L_XB}
    v_and_b32 v5, 31, v{vL}
    v_lshl_add_u32 v5, v5, 4, s{sA}
    ds_write_b128 v5, {v(vZ,4)}
    s_add_u32 s{sA}, s{sA}, 32
    v_lshlrev_b32 v{vB}, 5, v2
    v_lshl_add_u32 v{vB}, v3, 4, v{vB}
    v_add_u32 v{vB}, s{sA}, v{vB}
    s_add_u32 m0, s{sA}, 480
    s_lshl_b32 s{sA}, s{sW}, 10
    v_lshrrev_b32 v5, 2, v2
    v_xor_b32 v5, v5, v3
    v_lshlrev_b32 v{vYW}, 5, v2
    v_lshl_add_u32 v{vYW}, v5, 3, v{vYW}
    v_add_u32 v{vYW}, s{sA}, v{vYW}
    v_lshrrev_b32 v5, 4, v0
    v_and_b32 v5, 6, v5
    v_xor_b32 v5, v5, v0
    v_lshlrev_b32 v{vYR}, 2, v5
    v_add_u32 v{vYR}, {L_YS}, v{vYR}
    s_lshl_b32 s{zFC}, s{sG}, 7
    s_add_u32 s{zFC}, s{zFC}, {W_FLAGC}
    s_sub_u32 s{sA}, s{sJ}, 12
    s_lshr_b32 s{sA}, s{sA}, 1
    s_add_u32 s{sA}, s{sA}, 12
    s_and_b32 s{zH8}, s{sJ}, 1
    s_lshl_b32 s{zH8}, s{zH8}, 3
    s_movk_i32 s{zQ1}, 1280
    s_cmp_lt_u32 s{sJ}, 12
    s_cselect_b32 s{sA}, s{sJ}, s{sA}
    s_cselect_b32 s{zH8}, 0, s{zH8}
    s_cselect_b32 s{zN2}, 1, 0
    s_cselect_b32 s{zQ1}, s{zQ1}, 0x80000000
    s_lshl_b32 s{sA}, s{sA}, 3
    s_add_u32 s{sA}, s{sA}, s{sX}
    s_mul_i32 s{zBK}, s{sA}, 20480
    s_add_u32 s{zYB}, s{zBK}, {W_Y}
    s_mul_i32 s{sA}, s{sW}, 2560
    s_lshl_b32 s{sA}, s{sA}, s{zN2}
    s_mul_i32 s{zQB}, s{zH8}, 1280
    s_add_u32 s{zQB}, s{zQB}, s{zBK}
    s_add_u32 s{zQB}, s{zQB}, s{sA}
    s_lshl_b32 s{sA}, 2560, s{zN2}
    s_add_u32 s{R_Q+2}, s{zQB}, s{sA}
    s_mul_i32 s{sKEY}, s{sW}, 5120
    s_add_u32 s{sKEY}, s{sKEY}, {L_RK}
    s_sub_u32 s{zQL}, s{sKEY}, s{zQB}
    s_mul_i32 s{zW40}, s{sW}, 40
    s_mul_i32 s{zFL}, s{sX}, 3
    s_lshr_b32 s{sA}, s{sJ}, 3
    s_add_u32 s{zFL}, s{zFL}, s{sA}
    s_lshl_b32 s{zFL}, s{zFL}, 7
    s_add_u32 s{zFL}, s{zFL}, {W_FLAG1+48}
    s_add_u32 s{zFL+1}, s{zFL}, 16
    s_lshl_b32 s{sA}, s{sJ}, 2
    s_add_u32 s{sA}, s{sA}, s{sW}
    s_mul_i32 s{sA}, s{sA}, 7680
    s_mul_i32 s{sB}, s{sX}, 15
    s_lshr_b32 s{sB}, s{sB}, 1
    s_lshl_b32 s{sB}, s{sB}, 7
    s_add_u32 s{sA}, s{sA}, s{sB}
    s_and_b32 s{sB}, s{sX}, 1
    s_add_u32 s{sB}, s{sB}, 6
    v_and_b32 v5, 7, v{vL}
    v_min_u32 v5, s{sB}, v5
    v_lshl_add_u32 v5, v5, 7, s{sA}
    v_lshrrev_b32 v6, 3, v{vL}
    v_lshlrev_b32 v13, 1, v6
    v_or_b32 v13, 1, v13
    v_mul_u32_u24 v13, {80*7680}, v13
    v_add_u32 v13, v13, v5
    s_mov_b64 {s(R_G2,2)}, {s(P_WM,2)}
    s_mov_b32 s{R_G2+2}, 4915200
    s_mov_b32 s{R_G2+3}, 0x20000
    v_sub_u32 v4, 16, v4
    s_bitcmp1_b32 s{sW}, 0
    s_cselect_b32 s{sA}, 16, 0
    s_lshr_b32 s{sSD}, s{sSD}, s{sA}
    s_and_b32 s{sSD}, s{sSD}, 0xffff
    v_and_b32 v5, 1, v4
    v_lshlrev_b32 v5, 4, v5
    v_lshlrev_b32 v5, v5, s{sSD}
    v_ashrrev_i32 v4, 1, v4
    """)
    for m in range(4):
        A(f'v_cmp_eq_u32 vcc, {m}, v4')
        A.nop(2)
        A(f'v_cndmask_b32 v{vAD+m}, 0, v5, vcc')
    A.wait(vm=hF)
    stamp(1)
    A(f's_load_dwordx8 s[4:11], {s(P_DBG,2)}, s{sE}')
    for i in range(1, 4):
        A(f'v_mov_b32_dpp v{FP+i}, v{FK+4*i-1} wave_ror:1 row_mask:0xf bank_mask:0xf')
    for i in range(4):
        A(f'v_mov_b32_dpp v{FP+i}, v{FK+4*i+3} wave_shr:1 row_mask:0xf bank_mask:0xf')
    for i in range(4):
        d, t = FK + 4 * i, FT + 4 * (i % 3)
        A(f'ds_write_b128 v{vK}, {v(d,4)} offset:{L_KC+32+1024*i}')
        A(f'v_alignbyte_b32 v{t}, v{d}, v{FP+i}, 2')
        for m in range(1, 4):
            A(f'v_alignbyte_b32 v{t+m}, v{d+m}, v{d+m-1}, 2')
        A(f'ds_write_b128 v{vK}, {v(t,4)} offset:{L_KC+KC1+32+1024*i}')
    forder = [8 * a + r for r in range(8) for a in (1, 0)] + list(range(16, 64))

    def afrag_lines(q):
        o = 16 * (q & 15)
        return [f'ds_read2_b32 {a_(4*q,2)}, v{vA0+(q>>4)} offset0:{o} offset1:{o+1}',
                f'ds_read2_b32 {a_(4*q+2,2)}, v{vA0+(q>>4)} offset0:{o+2} offset1:{o+3}']
    fq = [(q, ln) for q in forder for ln in afrag_lines(q)]
    sPM, sCM = 4, 6

    def locality():
        for i in range(4, 12, 2):
            A(f's_xor_b64 {s(i,2)}, {s(i,2)}, {s(sXC,2)}')
        A('s_or_b64 s[4:5], s[4:5], s[6:7]')
        A('s_or_b64 s[8:9], s[8:9], s[10:11]')
        A('s_or_b64 s[4:5], s[4:5], s[8:9]')
        A(f's_or_b32 s{sLOC}, s4, s5')
        if not opt.get('local', 1):
            A(f's_or_b32 s{sLOC}, s{sLOC}, 1')
    A.wait0(lg=True)
    for _ in range(opt.get('npre', 16)):
        A(fq.pop(0)[1])
    for i in range(4):
        A(f'v_mov_b32 v{vZ+i}, -1')
    locality()
    A(f's_cselect_b64 {s(sPM,2)}, 0, 1')
    A(f's_mov_b64 {s(sCM,2)}, 0')
    vm_total = A.vm_n

    def taps(t):
        for jt in (3, 2, 1, 0):
            for p in range(2):
                d = v(KS + 4 * t + 2 * p, 2)
                x = v(KF + 4 * (t + 3 - jt) + 2 * p, 2)
                w = v(WF + 4 * jt + 2 * p, 2)
                if jt == 3:
                    A(f'v_pk_mul_f32 {d}, {x}, {w}')
                else:
                    A(f'v_pk_fma_f32 {d}, {x}, {w}, {d}')

    def kv_out(pol):
        for c in range(4):
            for m in range(4):
                A(f'v_cvt_pk_bf16_f32 v{KO+4*c+m}, v{KS+4*(7-2*m)+c}, v{KS+4*(6-2*m)+c}')
            A(f'buffer_store_dwordx4 {v(KO+4*c,4)}, v{vT}, {s(R_WS,4)}, {SOFF[c]} offen{pol}')

    def phase_a(tag, frags):
        TB = opt.get('tb', 7) if tag == 'c' else opt.get('tbn', 5)
        FR = opt.get('fr', 12)
        frags = list(frags)
        cnt = [0]

        def weave(fn):
            for ln in capture(fn):
                A(ln)
                cnt[0] += 2
                if frags and cnt[0] >= FR:
                    cnt[0] -= FR
                    A.lg(frags.pop(0))
        A(f's_waitcnt vmcnt({vm_total-hS})')
        A('s_barrier')
        stamp(2)
        A(f's_cmp_eq_u32 s{sW}, 3')
        A(f's_cbranch_scc1 L_w3{tag}')
        A.lg_n = 0
        hk = []
        for i in range(11):
            r = i + 1
            hk.append(A.lg(f'ds_read_b64 {v(KR+2*i,2)}, v{vRD} offset:{(r>>2)*RST+(r&3)*160}'))
        for c in range(4):
            A(f'v_lshlrev_b32 v{WF+c}, 16, v{SR+2*c}')
            A(f'v_and_b32 v{WF+4+c}, s{sHI}, v{SR+2*c}')
            A(f'v_lshlrev_b32 v{WF+8+c}, 16, v{SR+2*c+1}')
            A(f'v_and_b32 v{WF+12+c}, s{sHI}, v{SR+2*c+1}')
        for i in range(11):
            if i in (0, 4):
                A.wait(lg=hk[3 if i == 0 else 10])
            if i == 4 and tag == 'n':
                A(f's_load_dwordx8 s[4:11], {s(P_DBG,2)}, s{sE}')
            weave(lambda: (unpack(KF + 4 * i, KR + 2 * i), unpack(KF + 4 * i + 2, KR + 2 * i + 1)))
        for t in range(TB):
            weave(lambda: taps(t))
        while frags:
            A.lg(frags.pop(0))
        A(f's_waitcnt vmcnt({vm_total-hV})')
        A('s_barrier')
        for t in range(8):
            hv = A.lg(f'ds_read_b64 {v(VR+2*t,2)}, v{vRD} offset:{L_RV-L_RK+(t>>2)*RST+(t&3)*160}')
        for t in range(TB, 8):
            weave(lambda: taps(t))
        A.wait(lg=hv)

        def vpart(t):
            unpack(VF + 4 * t, VR + 2 * t)
            unpack(VF + 4 * t + 2, VR + 2 * t + 1)
            for p in range(2):
                A(f'v_pk_mul_f32 {v(KS+4*t+2*p,2)}, {v(KS+4*t+2*p,2)}, {v(VF+4*t+2*p,2)}')
        for t in range(8):
            weave(lambda: vpart(t))
        for ln in frags:
            A(ln)
        if tag == 'n':
            locality()
        A(f"""
        s_cmp_eq_u32 s{sW}, 2
        s_cselect_b32 exec_hi, 0, -1
        s_cmp_lg_u32 s{sLOC}, 0
        s_cbranch_scc1 L_kv_far
        """)
        kv_out('')
        stamp(3)
    woven = [fq.pop(0)[1] for _ in range(opt.get('ni', 16))]
    phase_a('c', woven)
    A.label('L_pre')
    A('s_mov_b64 exec, -1')
    for _ in range(min(opt.get('nfr1', 0), len(fq))):
        A(fq.pop(0)[1])
    A(f's_cmp_lg_u32 s{sW}, 3')
    A('s_cbranch_scc1 L_pre2')
    A.wait0(vm=True)
    A.label('L_pre2')
    A('s_barrier')
    stamp(4)
    A.vm_n = 0

    QR, YR, MR, WRR, WF4 = 16, 36, 208, 232, 204
    vQ, vQ1, vYA, vMG, vML, vMR, vTAU, vHL, vW8, vFC = 4, 5, 6, 7, 8, 9, 13, 14, 15, 3
    vQD, vQL, FC = 60, 253, 234
    sYB = zYB
    addr_lines = f"""
    v_mov_b32 v{vZ}, -1
    v_mov_b32 v{vZ+1}, -1
    v_mov_b32 v{vZ+2}, -1
    v_mov_b32 v{vZ+3}, -1
    |
    v_lshl_add_u32 v{vFA}, v{vL}, 2, s{zFC}
    v_lshl_add_u32 v{vQD}, v{vL}, 4, s{zQB}
    v_and_b32 v{vHL}, 31, v{vL}
    v_lshrrev_b32 v{vTAU}, 5, v0
    v_lshlrev_b32 v{vTAU}, s{zN2}, v{vTAU}
    v_add_u32 v{vTAU}, s{zH8}, v{vTAU}
    v_mul_u32_u24 v{vQ}, 1280, v{vTAU}
    v_lshl_add_u32 v{vQ}, v{vHL}, 3, v{vQ}
    v_add_u32 v{vQ}, s{zBK}, v{vQ}
    v_add_u32 v{vQ1}, s{zQ1}, v{vQ}
    v_add_u32 v{vQL}, s{zQL}, v{vQ}
    v_lshlrev_b32 v{vYA}, 7, v{vHL}
    v_lshl_add_u32 v{vYA}, v{vTAU}, 3, v{vYA}
    v_add_u32 v{vYA}, s{zYB}, v{vYA}
    v_min_u32 v2, 39, v{vL}
    v_add_lshl_u32 v2, v2, s{zW40}, 4
    v_lshlrev_b32 v{vFC}, 3, v2
    v_add_u32 v{vFC}, {W_FLAGC}, v{vFC}
    v_add_u32 v{vMG}, {W_MOD}, v2
    v_add_u32 v{vML}, {L_MOD}, v2
    v_lshrrev_b32 v{vW8}, 1, v2
    v_lshlrev_b32 v{vMR}, 4, v{vHL}
    v_add_u32 v{vMR}, {L_MOD}, v{vMR}
    """
    addr0, addr1 = ([ln.strip() for ln in part.strip().split('\n')] for part in addr_lines.split('|'))

    def modload_lines():
        so = ['0', s(sC5), s(sC10)]
        t = [f'buffer_load_dwordx4 {v(MR+4*i,4)}, v{vMG}, {s(R_WS,4)}, {so[i>>1]} offen offset:{2560*(i&1)} sc1' for i in range(6)]
        return [f'buffer_load_dword v{FC}, v{vFC}, {s(R_WS,4)}, 0 offen sc1'] + t

    NB = 10
    BE, BR, ACC, YP, YQ, YO, vPOLL = 64, 160, 16, 48, 52, 56, 200
    reads = []
    mlist = []
    early = {}
    for r in range(8):
        for b in range(3):
            early[(b, r)] = len(reads)
            reads.append((b, r, BE + 4 * len(reads)))
            mlist.append((early[(b, r)], b + 1, 8 + r))
            mlist.append((early[(b, r)], b, r))
            if r == 0:
                mlist.append((early[(b, 0)], b, -1))
    for a in range(2, 8):
        for r in range(8):
            for b in range(min(3, 8 - a)):
                mlist.append((early[(b, r)], a + b, 8 * a + r))
    NE = len(reads)
    for p in (1, 2, 3):
        for b in range(3, 2 * p + 2):
            for r in range(8):
                i = len(reads)
                reads.append((b, r, BR + 4 * ((i - NE) % NB)))
                for t in (2 * p, 2 * p + 1):
                    if t >= b:
                        mlist.append((i, t, 8 * (t - b) + r))
                if r == 0 and b >= 2 * p:
                    mlist.append((i, b, -1))
    NM = len(mlist)
    assert NM == 296
    first_m, last_m, last_t = {}, {}, {}
    for m, (i, t, q) in enumerate(mlist):
        first_m.setdefault(i, m)
        last_m[i] = m
        last_t[t] = m
    H = {}
    items = []
    issued = []
    cur = [0]
    smem = [False]
    covered = [0]

    def it(at, fn, cost=1, lds=0):
        items.append((at, len(items), cost, lds, fn))

    def lg(line):
        h = A.lg(line)
        issued.append((h, cur[0]))
        return h

    def lgwait(h):
        if h <= covered[0]:
            return
        if smem[0]:
            h = A.lg_n
            smem[0] = False
        h = max(h, A.lg_n - 15)
        A.wait(lg=h)
        covered[0] = h

    def lgline(name, line):
        def f():
            H[name] = lg(line)
        return f

    def vmline(name, line):
        def f():
            H[name] = A.vm(line)
        return f

    def plain(line):
        return lambda: A(line)

    def masked(mask, line, wait=False, name=None):
        def f():
            if wait:
                A.wait0(vm=True)
            A(f's_mov_b64 exec, {mask}')
            if name:
                H[name] = A.vm(line)
            else:
                A(line)
            A('s_mov_b64 exec, -1')
        return f
    VS = opt.get('vs', 5)
    LEAD, LAT = opt.get('lead', 16), opt.get('lat', 10)
    PF, PC, S0, S1 = opt.get('pf', 10), opt.get('pc', 14), opt.get('s0', 64), opt.get('s1', 90)
    PB = S1 + 22
    D1, D2 = opt.get('d1', 10), opt.get('d2', 20)
    for t in range(8):
        p, k = t >> 1, t & 1
        at = max(last_t[t] + 9, {0: S1 + 2, 1: PB + 3, 2: PB + 30}.get(t, 0))
        acc, d = ACC + 4 * t, YP + 2 * k
        it(at, plain(f'v_cvt_pk_bf16_f32 v{d}, v{acc}, v{acc+1}'))
        it(at, plain(f'v_cvt_pk_bf16_f32 v{d+1}, v{acc+2}, v{acc+3}'))
        it(at, lgline(('yw', t), f'ds_write_b64 v{vYW}, {v(d,2)} offset:{L_YS+4096*p+512*k}'), 1, 2)
        if k:
            def bar(t=t):
                if t == 1:
                    A.wait(vm=H['clr'])
                lgwait(H[('yw', t)])
                A('s_barrier')
            it(at + D1, bar, 2)
            it(at + D1, lgline('_', f'ds_read2st64_b32 {v(YQ,2)}, v{vYR} offset0:{16*p} offset1:{16*p+4}'), 1, 1)
            it(at + D1, lgline(('yr', p), f'ds_read2st64_b32 {v(YQ+2,2)}, v{vYR} offset0:{16*p+8} offset1:{16*p+12}'), 1, 1)
            it(at + D2, lambda p=p: lgwait(H[('yr', p)]))
            it(at + D2, plain(f'v_perm_b32 v{YO}, v{YQ+1}, v{YQ}, s{sPLO}'))
            it(at + D2, plain(f'v_perm_b32 v{YO+1}, v{YQ+3}, v{YQ+2}, s{sPLO}'))
            it(at + D2, plain(f'v_perm_b32 v{YO+2}, v{YQ+1}, v{YQ}, s{sPHI}'))
            it(at + D2, plain(f'v_perm_b32 v{YO+3}, v{YQ+3}, v{YQ+2}, s{sPHI}'))
            it(at + D2, vmline(('ys', p), f'buffer_store_dwordx4 {v(YO,4)}, v{vYG}, {s(R_WS,4)}, s{sH} offen sc1'))
            if p < 3:
                it(at + D2, plain(f's_add_u32 s{sH}, s{sH}, 655360'))
    it(PF, masked(s(sPM, 2), f'buffer_store_dword v{vFV}, v{vFA}, {s(R_WS,4)}, 0 offen', wait=True), 2)
    for p in range(4):
        it(PC + VS * p - 1, plain(f's_mov_b32 s{sE}, {655360*p}'))
        it(PC + VS * p, vmline('clr', f'buffer_store_dwordx4 {v(vZ,4)}, v{vYG}, {s(R_WS,4)}, s{sE} offen sc1'))
    if opt.get('fill', 1):
        it(PC + VS * 4, masked('0xfffff', f'buffer_load_dword v62, v63, {s(R_WS,4)}, 0 offen sc1', name='_'), 2)
    if opt.get('wpf', 1):
        it(PC + VS * 5, vmline('_', f'buffer_load_dword v61, v13, {s(R_G2,4)}, 0 offen'))
    it(PC + VS * 5, plain(f's_mov_b32 s8, s{sT}'))
    it(PC + VS * 5, plain(f's_mov_b32 s9, s{sT}'))
    low = [(PC + VS * 5 + 2, ln) for ln in addr1]

    def spoll():
        lgwait(max(h for (h, im) in issued if im <= cur[0] - LAT))
        A(f's_load_dwordx4 s[12:15], {s(P_WS,2)}, s{zFL}')
        A(f's_load_dwordx16 s[16:31], {s(P_WS,2)}, s{zFL+1}')
        smem[0] = True

    def swait():
        if smem[0]:
            A.wait0(lg=True)
            covered[0] = A.lg_n
            smem[0] = False
    it(S0, spoll, 2)
    it(S1, swait)
    for i in range(12, 32, 2):
        it(S1, plain(f's_xor_b64 {s(i,2)}, {s(i,2)}, s[8:9]'))
        if 12 < i < 30:
            it(S1, plain(f's_or_b64 s[12:13], s[12:13], {s(i,2)}'))

    def schk():
        A('s_or_b64 s[12:13], s[12:13], s[30:31]')
        A('s_cbranch_scc1 L_kv1')
        A.label('L_kv1_ok')
    it(S1, schk, 2)

    def late0():
        A('s_mov_b32 exec_lo, 0')
        H[('x', 2)] = A.vm(f'buffer_load_dwordx4 v{vDM}, {s(R_WS,4)}, 0 offen offset:1024 sc1 lds')
        A('s_mov_b32 exec_lo, -1')
    it(S1 + 1, late0, 2)
    for i in (2, 3):
        it(PB + VS * (i - 1), vmline(('x', i + 1), f'buffer_load_dwordx4 v{vDM}, {s(R_WS,4)}, 0 offen offset:{1024*i} sc1 lds'))
    at = PB + 3 + D1 + 2
    assert at > PB + 2 * VS
    it(at, masked(s(sCM, 2), f'buffer_store_dword v{vFV}, v{vFA}, {s(R_WS,4)}, 0 offen sc1'), 2)
    it(at, plain(f's_mov_b32 m0, s{sKEY}'))
    at = PB + 3 + D2 + opt.get('qd', 8)
    for i in range(5):
        if i == 4:
            it(at + VS * i - 2, plain('s_add_u32 m0, m0, 4096'))
            it(at + VS * i - 2, plain(f'v_add_u32 v{vQD}, 4096, v{vQD}'))
        it(at + VS * i, vmline('_', f'buffer_load_dwordx4 v{vQD}, {s(R_Q,4)}, 0 offen offset:{1024*(i&3)} lds'))
    it(at + VS * 5, vmline('_', f'buffer_load_dwordx2 {v(WRR,2)}, v{vW8}, {s(R_WR,4)}, 0 offen'))
    for k, ln in enumerate(modload_lines()):
        it(NM - opt.get('modlead', 38) + VS * k, vmline('mod', ln))
    items.sort(key=lambda x: (x[0], x[1]))
    fh = {}
    XBLK = [0, 0, 1, 2, 3, 3, 4, 4]
    A(f's_mov_b32 s{sH}, 0')
    A.lg_n = 0
    hB = {}
    landed = [1]
    rd = [0]

    def frag_emit():
        q, ln = fq.pop(0)
        fh[q] = lg(ln)

    def bread():
        i = rd[0]
        b, r, reg = reads[i]
        cost = 1
        if XBLK[b] > landed[0]:
            A.wait(vm=H[('x', XBLK[b])])
            landed[0] = XBLK[b]
            cost += 1
        hB[i] = lg(f'ds_read_b128 {v(reg,4)}, v{vB} offset:{64*(8*b-r+7)}')
        rd[0] += 1
        return cost

    def can_read(m):
        i = rd[0]
        if i >= len(reads) or first_m[i] - m > (LEAD if XBLK[reads[i][0]] <= landed[0] else opt.get('xlead', 11)):
            return False
        return i < NE + NB or last_m[i - NB] < m
    for _ in range(opt.get('nb0', 4)):
        bread()
    started = set()
    MST = [27, 64, PB, 150, 176, 226, NM - 14, NM - 8]
    ldsfree = 0
    for m, (i, t, q) in enumerate(mlist):
        cur[0] = m
        if opt.get('mst') == 2 and m in MST and not smem[0]:
            stamp(17 + MST.index(m))
        budget = 2
        while rd[0] <= i:
            budget -= bread()
            if opt.get('verbose'):
                print(m, 'forced B read')
        while q >= 0 and any(x[0] == q for x in fq):
            frag_emit()
            budget -= 1
            if opt.get('verbose'):
                print(m, 'forced fragment read')
        need = max(hB[i], fh.get(q, 0))
        if need > covered[0]:
            budget -= 1
        quiet = smem[0] and m >= S1 - 6

        def run_item():
            x = items.pop(0)
            x[4]()
            if opt.get('verbose'):
                print(m, x[0], A.lines[-1][:70])
            return x
        while budget > 0:
            ok = items and items[0][0] <= m and items[0][2] <= budget and (items[0][3] == 0 or ldsfree <= m)
            if ok and (items[0][3] or (items[0][2] == 2 and items[0][0] <= m - 1)):
                x = run_item()
                budget -= x[2]
                ldsfree = max(ldsfree, m + x[3])
            elif ldsfree <= m and not quiet and can_read(m):
                budget -= bread()
                ldsfree = m + 1
            elif ldsfree <= m and not quiet and fq:
                frag_emit()
                budget -= 1
                ldsfree = m + 1
            elif ok:
                budget -= run_item()[2]
            elif low and low[0][0] <= m:
                A(low.pop(0)[1])
                budget -= 1
            else:
                break
        if need > covered[0]:
            if opt.get('verbose'):
                age = m - [im for (h, im) in issued if h == need][0]
                if age < LAT or smem[0]:
                    print(m, 'short wait, age', age, 'smem', smem[0])
            lgwait(max([need] + [h for (h, im) in issued if im <= m - LAT]))
        acc = v(ACC + 4 * t, 4)
        src = v(vAD, 4) if q < 0 else a_(4 * q, 4)
        A(f'v_mfma_f32_16x16x32_bf16 {acc}, {src}, {v(reads[i][2],4)}, {acc if t in started else "0"}')
        started.add(t)
    assert not low and not fq
    if opt.get('mst'):
        stamp(16)
    n0 = len(A.lines)
    while items and items[0][0] <= NM:
        items.pop(0)[4]()
    A.nop(8 - (len(A.lines) - n0))
    for x in items:
        x[4]()
    stamp(6)

    A(f's_mov_b32 s{sSPIN}, {SPIN}')
    A.wait(vm=H['mod'])
    for i in range(10):
        A(f'ds_read_b64 {v(QR+2*i,2)}, v{vQL} offset:{256*i}')
    A('s_branch L_modchk')
    A.label('L_modre')
    for ln in modload_lines():
        A(ln)
    A.wait0(vm=True)
    A.label('L_modchk')
    tagcheck(2, [MR + 4 * i + k for i in range(6) for k in (0, 3)], [FC])
    spin_end('L_modre')
    stamp(7)
    A(f's_cmp_ge_u32 s{sJ}, 12')
    A('s_cbranch_scc1 L_ln1')

    def yload_lines(n):
        w = 'x2' if n == 1 else 'x4'
        return [f'buffer_load_dword{w} {v(YR+2*n*i,2*n)}, v{vYA}, {s(R_WS,4)}, {SOFF[i]} offen sc1' for i in range(5)]

    def token_phase(n):
        U = range(n)
        QF = [88, 108]
        GH = [128, 148]
        K0, K1, K2, K3 = 168, 188, 208, 228
        X0 = 56
        mean = [X0, X0 + 2]
        rs = [X0 + 4, X0 + 6]
        dot = [X0 + 5, X0 + 7]
        tq = [X0 + 8, X0 + 12]
        tp = [X0 + 16, X0 + 18, X0 + 20, X0 + 22]
        tr = X0 + 24
        vSC, vID, vKA, vRO = 7, 10, 15, 3

        def const_lines(dst, seg):
            return [f'ds_read_b128 {v(dst+4*i,4)}, v{vMR} offset:{2560*seg+512*i}' for i in range(5)]

        def consts(dst, seg):
            for ln in const_lines(dst, seg):
                A(ln)

        def center(dst, src):
            for i in range(10):
                for u in U:
                    A(f'v_pk_add_f32 {v(dst[u]+2*i,2)}, {v(src[u]+2*i,2)}, {v(mean[u],2)} op_sel_hi:[1,0] neg_lo:[0,1] neg_hi:[0,1]')

        def rstd():
            for u in U:
                A(f'v_fma_f32 v{rs[u]}, v{rs[u]}, s{sA}, v{tr+4}')
            for u in U:
                A(f'v_rsq_f32 v{rs[u]}, v{rs[u]}')

        def ln1():
            for u in U:
                for i in range(10):
                    unpack(QF[u] + 2 * i, QR + 10 * u + i)
            A(f's_mov_b32 s{sA}, {hexf(1/640)}')
            A(f'v_mov_b32 v{tr+4}, {hexf(1e-5)}')
            sums20([(mean[u], QF[u], tq[u]) for u in U])
            red32([mean[u] for u in U], tr)
            for u in U:
                A(f'v_mul_f32 v{mean[u]}, s{sA}, v{mean[u]}')
            center(GH, QF)
            dots20([(rs[u], GH[u], GH[u], tp[u]) for u in U])
            red32([rs[u] for u in U], tr)
            rstd()
            A(f"""
            v_lshlrev_b32 v{vSC}, 2, v{vTAU}
            v_add_u32 v{vSC}, {L_SCR}, v{vSC}
            s_lshl_b32 s{sB}, s{sG}, 4
            v_add_u32 v{vID}, s{sB}, v{vTAU}
            """)
            for i in range(10):
                for u in U:
                    A(f'v_pk_mul_f32 {v(GH[u]+2*i,2)}, {v(GH[u]+2*i,2)}, {v(rs[u],2)} op_sel_hi:[1,0]')
        VL = capture(ln1)
        mSA, mCA, mGA, mSB, mCB, mGB = (MR + 4 * i for i in range(6))

        def mask(r):
            return [f'v_and_b32 v{r+i}, s{sHI}, v{r+i}' for i in range(4)]

        def pk(op, d, x, y, z=None, mod=''):
            return [f'v_pk_{op}_f32 {v(d+k,2)}, {v(x+k,2)}, ' + (y if isinstance(y, str) else v(y + k, 2)) +
                    (f', {v(z+k,2)}' if z is not None else '') + mod for k in (0, 2)]
        groups = [(mask(mSB), mSB, 4), (mask(mGB), mGB, 5),
                  (mask(mCB) + pk('add', mCB, mCB, '1.0', mod=' op_sel_hi:[1,0]'), mCB, 3),
                  (capture(lambda: (unpack(WF4, WRR), unpack(WF4 + 2, WRR + 1))) + pk('mul', WF4, WF4, mCB), WF4, 2),
                  (mask(mSA) + mask(mGA) + pk('mul', mSA, mSA, mGA), mSA, 1),
                  (mask(mCA) + pk('fma', mCA, mCA, mGA, mGA), mCA, 0)]
        seq = ['s_waitcnt lgkmcnt(0)']
        WG = opt.get('wgap', 9)
        for k, (pre, r, seg) in enumerate(groups):
            if k:
                for _ in range(max(0, WG - len(pre))):
                    seq.append(VL.pop(0))
            seq += pre
            seq.append(f'ds_write_b128 v{vML}, {v(r,4)} offset:{2560*seg}')
        for _ in range(WG):
            seq.append(VL.pop(0))
        seq += ['s_waitcnt lgkmcnt(0)', 's_barrier']
        ybase = len(seq)
        rdl = const_lines(K0, 0) + const_lines(K1, 1) + const_lines(K2, 4) + const_lines(K3, 5)
        per = max(2, min(4, len(VL) // 12))
        nrd = 0
        while VL:
            if rdl:
                seq.append(rdl.pop(0))
                nrd += 1
            for _ in range(min(per, len(VL))):
                seq.append(VL.pop(0))
        while nrd < 10:
            seq.append(rdl.pop(0))
            nrd += 1
        seq.append(f's_waitcnt lgkmcnt({nrd-10})')
        for i in range(10):
            for u in U:
                seq.append(f'v_pk_fma_f32 {v(GH[u]+2*i,2)}, {v(GH[u]+2*i,2)}, {v(K0+2*i,2)}, {v(K1+2*i,2)}')
            if rdl:
                seq.append(rdl.pop(0))
        seq += rdl
        vYD, vYL = 248, 249
        if n == 2:
            pre = f'''
            v_lshrrev_b32 v2, 4, v0
            v_xor_b32 v2, v2, v0
            v_and_b32 v2, 7, v2
            v_and_b32 v{vYD}, 0xf8, v0
            v_or_b32 v2, v2, v{vYD}
            v_lshl_add_u32 v{vYD}, v2, 4, s{sYB}
            v_lshrrev_b32 v2, 1, v{vTAU}
            v_lshrrev_b32 v{vYL}, 1, v{vHL}
            v_xor_b32 v2, v2, v{vYL}
            v_and_b32 v2, 7, v2
            v_lshlrev_b32 v{vYL}, 7, v{vHL}
            v_lshl_add_u32 v{vYL}, v2, 4, v{vYL}
            s_lshl_b32 m0, s{sW}, 10
            '''
            dma = [f'buffer_load_dwordx4 v{vYD}, {s(R_WS,4)}, {SOFF[i]} offen sc1 lds' for i in range(5)]
            yrd = [f'ds_read_b128 {v(YR+4*i,4)}, v{vYL} offset:{4096*i}' for i in range(5)]
        else:
            pre = f'''
            v_lshrrev_b32 v2, 4, v0
            v_xor_b32 v2, v2, v0
            v_and_b32 v2, 3, v2
            v_lshrrev_b32 v{vYD}, 2, v0
            v_lshlrev_b32 v{vYD}, 7, v{vYD}
            v_lshl_add_u32 v{vYD}, v2, 4, v{vYD}
            s_and_b32 s{sC}, s{sJ}, 1
            s_lshl_b32 s{sC}, s{sC}, 6
            s_add_u32 s{sC}, s{sC}, s{sYB}
            v_add_u32 v{vYD}, s{sC}, v{vYD}
            v_lshrrev_b32 v2, 2, v{vHL}
            v_xor_b32 v2, s{sW}, v2
            v_and_b32 v2, 3, v2
            v_lshlrev_b32 v{vYL}, 6, v{vHL}
            v_lshl_add_u32 v{vYL}, v2, 4, v{vYL}
            v_and_b32 v2, 1, v{vTAU}
            v_lshl_add_u32 v{vYL}, v2, 3, v{vYL}
            s_lshl_b32 m0, s{sW}, 10
            s_cmp_lt_u32 s{sW}, 2
            s_cselect_b64 {s(sC,2)}, -1, 0
            '''
            dma = [f'buffer_load_dwordx4 v{vYD}, {s(R_WS,4)}, {SOFF[2*i]} offen sc1 lds' for i in range(3)]
            dma[2] = f's_mov_b64 exec, {s(sC,2)}\n' + dma[2] + '\ns_mov_b64 exec, -1'
            yrd = [f'ds_read_b64 {v(YR+2*i,2)}, v{vYL} offset:{2048*i}' for i in range(5)]
        ypos = ybase + (0 if n == 2 else opt.get('ypos', 0))
        for k, ln in enumerate(dma):
            if k < len(dma) - 1:
                ln += '\ns_add_u32 m0, m0, 4096'
            seq.insert(min(ypos + opt.get('ysp', 6) * k, len(seq)), ln)
        A(pre)
        for ln in seq:
            A(ln)
        consts(K0, 2)
        consts(K1, 3)
        A(f'''
        s_lshl_b32 s{sB}, s{sG}, 7
        s_add_u32 s{sB}, s{sB}, {W_KEYS}
        v_lshlrev_b32 v{vKA}, 3, v{vL}
        v_add_u32 v{vKA}, s{sB}, v{vKA}
        s_mul_i32 s{sB}, s{sG}, 2560
        v_lshl_add_u32 v{vRO}, v{vHL}, 4, s{sB}
        s_and_b32 s{sB}, s{sJ}, {1 if n == 1 else 0}
        s_lshl_b32 s{sB}, s{sB}, 5
        s_add_u32 s{sB}, s{sB}, {L_SCR}
        v_mov_b32 v{vHL}, s{sB}
        s_movk_i32 s{sB}, 0xf000
        ''')
        stamp(8)
        A(f's_mov_b32 s{sSPIN}, {SPIN}')
        A.wait0(vm=True)
        A('s_barrier')
        for ln in yrd:
            A(ln)
        A.wait0(lg=True)
        A.label(f'L_ychk{n}')
        ys = [YR + 2 * k for k in range(5 * n)]
        A(f'v_max3_u32 v2, v{ys[0]}, v{ys[1]}, v{ys[2]}')
        for k in range(3, 5 * n - 1, 2):
            A(f'v_max3_u32 v2, v2, v{ys[k]}, v{ys[k+1]}')
        if n == 2:
            A(f'v_max_u32 v2, v2, v{ys[9]}')
        A('v_cmp_eq_u32 vcc, -1, v2')
        A(f's_cbranch_vccnz L_yre{n}')
        A.label(f'L_yok{n}')

        def retry():
            A.label(f'L_yre{n}')
            A(f's_sub_u32 s{sSPIN}, s{sSPIN}, 1')
            A(f's_cbranch_scc1 L_yok{n}')
            for i in range(5):
                if n == 2:
                    A(f'v_max_u32 v2, v{YR+4*i}, v{YR+4*i+2}')
                A(f'v_cmp_eq_u32 {s(4+2*i,2)}, -1, v{2 if n == 2 else YR+2*i}')
            for i, ln in enumerate(yload_lines(n)):
                A(f's_mov_b64 exec, {s(4+2*i,2)}')
                A(ln)
            A('s_mov_b64 exec, -1')
            A.wait0(vm=True)
            A(f's_branch L_ychk{n}')
        late.append(retry)
        stamp(9)
        YF = 16
        for i in range(5):
            for u in U:
                t = YF + 4 * ((i * n + u) % 5)
                unpack(t, YR + 2 * n * i + 2 * u)
                unpack(t + 2, YR + 2 * n * i + 2 * u + 1)
                for k in (0, 2):
                    A(f'v_pk_fma_f32 {v(GH[u]+4*i+k,2)}, {v(GH[u]+4*i+k,2)}, {v(t+k,2)}, {v(QF[u]+4*i+k,2)}')
        X1, XC = GH, QF
        sums20([(mean[u], X1[u], tq[u]) for u in U])
        red32([mean[u] for u in U], tr)
        for u in U:
            A(f'v_mul_f32 v{mean[u]}, s{sA}, v{mean[u]}')
        center(XC, X1)
        A.wait0(lg=True)
        dots20([(rs[u], XC[u], XC[u], tp[u]) for u in U] + [(dot[u], XC[u], K0, tp[2 + u]) for u in U])
        red32([rs[u] for u in U] + [dot[u] for u in U], tr)
        rstd()
        if n == 2:
            A(f'v_add_u32 v{vID+1}, 1, v{vID}')
        else:
            A.nop(1)
        for u in U:
            A(f'v_mul_f32 v{dot[u]}, v{dot[u]}, v{rs[u]}')
        for u in U:
            A(f'v_ashrrev_i32 v{tq[u]}, 31, v{dot[u]}')
        for u in U:
            A(f'v_or_b32 v{tq[u]}, 0x80000000, v{tq[u]}')
        for u in U:
            A(f'v_xor_b32 v{tq[u]}, v{tq[u]}, v{dot[u]}')
        for u in U:
            A(f'v_and_or_b32 v{vID+u}, v{tq[u]}, s{sB}, v{vID+u}')
        A(f'ds_write_b{32*n} v{vSC}, {v(vID,n)}')
        for i in range(10):
            for u in U:
                A(f'v_pk_mul_f32 {v(XC[u]+2*i,2)}, {v(XC[u]+2*i,2)}, {v(rs[u],2)} op_sel_hi:[1,0]')
            if i == 9 // n:
                A.wait0(lg=True)
                A('s_barrier')
                for k in range(2 * n):
                    A(f'ds_read_b128 {v(16+4*k,4)}, v{vHL} offset:{16*k}')
        for i in range(10):
            for u in U:
                A(f'v_pk_fma_f32 {v(XC[u]+2*i,2)}, {v(XC[u]+2*i,2)}, {v(K1+2*i,2)}, {v(K2+2*i,2)}')
        H2 = XC
        A(f'v_mov_b32 v{tr+1}, s{sT}')
        A.wait0(lg=True)
        ks = list(range(16, 16 + 8 * n))
        A(f'v_max3_u32 v{tr}, v{ks[0]}, v{ks[1]}, v{ks[2]}')
        for k in range(3, 8 * n - 1, 2):
            A(f'v_max3_u32 v{tr}, v{tr}, v{ks[k]}, v{ks[k+1]}')
        A(f'v_max_u32 v{tr}, v{tr}, v{ks[-1]}')
        A(f'''
        s_cmp_lg_u32 s{sW}, 0
        s_cbranch_scc1 L_nokey{n}
        s_mov_b64 exec, 0xffff
        buffer_store_dwordx2 {v(tr,2)}, v{vKA}, {s(R_WS,4)}, 0 offen sc1
        s_mov_b64 exec, -1
        ''')
        A.label(f'L_nokey{n}')
        stamp(10)
        win = [sC, sE]
        for u in U:
            A(f'v_cmp_eq_u32 {s(win[u],2)}, v{tr}, v{vID+u}')
        A(f'v_mov_b32 v{tr+1}, s{sTAG}')
        A(f's_mov_b32 s{sA}, {W_ROWS}')
        for u in U:
            A(f's_cmp_eq_u64 {s(win[u],2)}, 0')
            A(f's_cbranch_scc1 L_norow{n}{u}')
            A(f's_mov_b64 exec, {s(win[u],2)}')
            for i in range(5):
                for k in range(2):
                    A(f'v_cvt_pk_bf16_f32 v2, v{H2[u]+4*i+2*k}, v{H2[u]+4*i+2*k+1}')
                    A(f'v_lshl_or_b32 v{16+4*i+2*k}, v2, 16, v{tr+1}')
                    A(f'v_and_or_b32 v{17+4*i+2*k}, v2, s{sHI}, v{tr+1}')
                A(f'buffer_store_dwordx4 {v(16+4*i,4)}, v{vRO}, {s(R_WS,4)}, s{sA} offen offset:{512*i} sc1')
            A('s_mov_b64 exec, -1')
            A.label(f'L_norow{n}{u}')
        vOP = 6
        A('v_bfrev_b32 v2, 1')
        for u in U:
            A(f'v_cndmask_b32 v{vOP+u}, v{vQ+u}, v2, {s(win[u],2)}')
        for u in U:
            for i in range(5):
                for k in (0, 2):
                    A(f'v_pk_fma_f32 {v(X1[u]+4*i+k,2)}, {v(K3+4*i+k,2)}, {v(H2[u]+4*i+k,2)}, {v(X1[u]+4*i+k,2)}')
                o = 36 + 10 * u + 2 * i
                A(f'v_cvt_pk_bf16_f32 v{o}, v{X1[u]+4*i}, v{X1[u]+4*i+1}')
                A(f'v_cvt_pk_bf16_f32 v{o+1}, v{X1[u]+4*i+2}, v{X1[u]+4*i+3}')
                A(f'buffer_store_dwordx2 {v(o,2)}, v{vOP+u}, {s(R_OUT,4)}, 0 offen offset:{256*i}')
        A(f's_movk_i32 s{sB}, 0xff')
        A(f's_mov_b32 s{sA}, {W_BASE}')
        for u in U:
            A(f's_cmp_eq_u64 {s(win[u],2)}, 0')
            A(f's_cbranch_scc1 L_nobase{n}{u}')
            A(f's_mov_b64 exec, {s(win[u],2)}')
            for i in range(5):
                A(f'buffer_store_dwordx2 {v(36+10*u+2*i,2)}, v{vQ+u}, {s(R_OUT,4)}, 0 offen offset:{256*i} sc1')
            for i in range(20):
                A(f'v_bfi_b32 v{X1[u]+i}, s{sB}, v{tr+1}, v{X1[u]+i}')
            A.wait0(vm=True)
            for i in range(5):
                A(f'buffer_store_dwordx4 {v(X1[u]+4*i,4)}, v{vRO}, {s(R_WS,4)}, s{sA} offen offset:{512*i} sc1')
            A('s_mov_b64 exec, -1')
            A.label(f'L_nobase{n}{u}')
        stamp(11)
        A('s_branch L_fin')
    late = []
    token_phase(2)
    late.pop()()
    A.label('L_ln1')
    token_phase(1)
    late.pop()()

    for lab, addr in (('L_kv1', vPL),):
        A.label(lab)
        if stamps:
            A(f'v_writelane_b32 v{vSTAMP}, 1, 30')
        A(f's_mov_b32 s{sSPIN}, {SPIN}')
        A.label(lab + '_re')
        A(f'buffer_load_dword v{vPOLL}, v{addr}, {s(R_WS,4)}, 0 offen sc1')
        A.wait0(vm=True)
        A(f'v_cmp_ne_u32 vcc, s{sT}, v{vPOLL}')
        A(f's_cbranch_vccz {lab}_ok')
        A(f's_sub_u32 s{sSPIN}, s{sSPIN}, 1')
        A(f's_cbranch_scc0 {lab}_re')
        A(f's_branch {lab}_ok')

    A.label('L_w3c')
    A(f'v_subrev_u32 v16, 12288, v{vDM}')
    A(f's_mov_b64 {s(sPM,2)}, 0')
    A(f's_mov_b32 s{sCM}, -1')
    W3A = opt.get('w3a', 16)
    for ln in woven[:W3A]:
        A(ln)
    A(f's_waitcnt vmcnt({vm_total-hV})')
    A('s_barrier')
    A('s_mov_b64 exec, 0xfff')
    lab = spin_begin('kv0')
    A(f'buffer_load_dword v2, v{vPL}, {s(R_WS,4)}, 0 offen sc1')
    A.wait0(vm=True)
    A(f'v_cmp_ne_u32 vcc, s{sT}, v2')
    spin_end(lab)
    stamp(3)
    for half in (0, 1):
        A('s_mov_b64 exec, -1' if half == 0 else 's_mov_b32 exec_hi, 0')
        for c in range(4):
            A(f's_mov_b32 m0, {L_XB+XBW*c+512}')
            A.nop(1)
            A(f'buffer_load_dwordx4 v16, {s(R_WS,4)}, {SOFF[c]} offen offset:{1024*half} sc1 lds')
    A('s_mov_b64 exec, -1')
    for ln in woven[W3A:]:
        A(ln)
    A('s_branch L_pre')

    A.label('L_kv_far')
    if stamps:
        A(f'v_writelane_b32 v{vSTAMP}, 1, 31')
    kv_out(' sc1')
    A.wait0(vm=True)
    A('s_mov_b64 exec, 1')
    A(f'buffer_store_dword v{vFV}, v{vFA}, {s(R_WS,4)}, 0 offen sc1')
    A(f's_cmp_lt_u32 s{sJ}, 20')
    A('s_cbranch_scc1 L_pre')
    A('s_branch L_early_w3')

    A.label('L_w3n')
    A(f's_waitcnt vmcnt({vm_total-hV})')
    A('s_barrier')
    A('s_branch L_early_w3')
    A.label('L_nconv')
    phase_a('n', [])
    A('s_mov_b64 exec, 1')
    A.wait0(vm=True)
    A(f'buffer_store_dword v{vFV}, v{vFA}, {s(R_WS,4)}, 0 offen')
    A.label('L_early_w3')
    A(f"""
    s_mov_b64 exec, -1
    s_mul_i32 s{sF}, s{sX}, 7
    s_add_u32 s{sF}, s{sF}, s{sJ}
    s_sub_u32 s{sF}, s{sF}, 25
    s_mul_i32 s{sC}, s{sX}, 15
    s_lshr_b32 s{sC}, s{sC}, 1
    s_sub_u32 s{sMI}, s{sJ}, 17
    s_lshr_b32 s{sMI}, s{sMI}, 1
    s_add_u32 s{sMI}, s{sMI}, s{sC}
    s_bitcmp1_b32 s{sF}, 0
    s_cselect_b32 s{sMI}, s{sMI}, 99
    s_mul_i32 s{sA}, s{sX}, 5
    s_add_u32 s{sA}, s{sA}, s{sJ}
    s_sub_u32 s{sA}, s{sA}, 20
    s_add_u32 s{sB}, s{sC}, s{sJ}
    s_sub_u32 s{sB}, s{sB}, 20
    s_cmp_eq_u32 s{sJ}, 24
    s_cselect_b32 s{sB}, 99, s{sB}
    s_cmp_lt_u32 s{sJ}, 25
    s_cselect_b32 s{sF}, s{sA}, s{sF}
    s_cselect_b32 s{sMI}, s{sB}, s{sMI}
    s_barrier
    """)
    A.label('L_roles')
    stamp(4)
    vKH, vCC, vRW, vXW, vXW2, vXR, vL16 = 4, 5, 6, 7, 8, 9, 10
    A(f'''
    v_lshrrev_b32 v{vKH}, 4, v{vL}
    v_bfe_u32 v11, v{vL}, 2, 3
    v_and_b32 v{vCC}, 3, v{vL}
    v_lshrrev_b32 v2, 5, v{vL}
    v_lshl_add_u32 v{vRW}, v2, 4, v11
    s_mul_i32 s{sA}, s{sW}, {XAW}
    s_add_u32 s{sA}, s{sA}, {L_A}
    v_lshl_add_u32 v{vXR}, v{vKH}, 4, s{sA}
    v_lshlrev_b32 v{vL16}, 4, v{vL}
    v_and_b32 v14, 15, v{vL}
    v_lshlrev_b32 v15, 2, v14
    ''')
    quadpos(vXW, vL, 2)
    A(f'''
    v_and_b32 v{vXW2}, 255, v{vXW}
    v_add_u32 v{vXW}, s{sA}, v{vXW}
    v_add_u32 v{vXW2}, s{sA}, v{vXW2}
    s_cmp_ge_u32 s{sMI}, 60
    s_cbranch_scc1 L_nomod
    ''')
    srd(R_G1, P_C, 1280)
    srd(R_G2, P_WM, 4915200)
    A(f'''
    v_lshlrev_b32 v2, 3, v{vL}
    v_and_b32 v3, 255, v2
    buffer_load_dwordx2 v[16:17], v2, {s(R_G1,4)}, 0 offen
    buffer_load_dwordx2 v[18:19], v2, {s(R_G1,4)}, 0 offen offset:512
    buffer_load_dwordx2 v[20:21], v3, {s(R_G1,4)}, 0 offen offset:1024
    v_lshrrev_b32 v2, 3, v{vL}
    v_and_b32 v3, 6, v2
    v_xor_b32 v3, v3, v{vL}
    v_and_b32 v3, 7, v3
    v_mul_u32_u24 v12, 7680, v2
    v_lshl_add_u32 v12, v3, 4, v12
    s_lshl_b32 s{sA}, s{sMI}, 7
    v_add_u32 v12, s{sA}, v12
    s_mul_i32 s{sC}, s{sW}, 20480
    s_mul_i32 s{sD_}, s{sW}, {20*61440}
    ''')
    dma_loop(12, R_G2, 20, 61440, s(sC), s(sD_))
    A('s_waitcnt vmcnt(20)')
    for i in range(6):
        unpack(24 + 2 * i, 16 + i)
    for i in range(12):
        A(f'v_mul_f32 v{40+i}, {LOG2E_NEG}, v{24+i}')
    for i in range(12):
        A(f'v_exp_f32 v{40+i}, v{40+i}')
    for i in range(12):
        A(f'v_add_f32 v{40+i}, 1.0, v{40+i}')
    for i in range(12):
        A(f'v_rcp_f32 v{40+i}, v{40+i}')
    for i in range(12):
        A(f'v_mul_f32 v{24+i}, v{24+i}, v{40+i}')
    for i in range(6):
        A(f'v_cvt_pk_bf16_f32 v{16+i}, v{24+2*i}, v{25+2*i}')
    A(f'''
    ds_write_b64 v{vXW}, v[16:17]
    ds_write_b64 v{vXW}, v[18:19] offset:512
    ds_write_b64 v{vXW2}, v[20:21] offset:1024
    v_lshrrev_b32 v2, 1, v11
    v_xor_b32 v2, s{sW}, v2
    v_lshlrev_b32 v12, 7, v{vRW}
    v_lshl_add_u32 v12, v2, 5, v12
    v_lshl_add_u32 v12, v{vCC}, 3, v12
    v_add_u32 v13, 40960, v12
    ''')
    for q in range(20):
        A(f'ds_read_b128 {v(64+4*q,4)}, v{vXR} offset:{64*q}')
    A.wait0(vm=True, lg=True)
    A('s_barrier')
    stamp(5)
    A.lg_n = 0
    hq = []
    for q in range(20):
        base, o = (12, q * 4096) if q < 10 else (13, (q - 10) * 4096)
        A.lg(f'ds_read_b64_tr_b16 {v(144+4*q,2)}, v{base} offset:{o}')
        hq.append(A.lg(f'ds_read_b64_tr_b16 {v(146+4*q,2)}, v{base} offset:{o+1024}'))
        if q >= 6:
            A.wait(lg=hq[q - 6])
            A(f'v_mfma_f32_16x16x32_bf16 v[224:227], {v(64+4*(q-6),4)}, {v(144+4*(q-6),4)}, {"0" if q == 6 else "v[224:227]"}')
    for q in range(14, 20):
        A.wait(lg=hq[q])
        A(f'v_mfma_f32_16x16x32_bf16 v[224:227], {v(64+4*q,4)}, {v(144+4*q,4)}, v[224:227]')
    A(f'''
    s_lshl_b32 s{sA}, s{sMI}, 8
    s_lshl_b32 s{sB}, s{sW}, 6
    s_add_u32 s{sA}, s{sA}, s{sB}
    s_add_u32 s{sA}, s{sA}, {W_MOD}
    v_lshlrev_b32 v2, 2, v{vL}
    v_mov_b32 v3, s{sTAG}
    s_nop 1
    v_cvt_pk_bf16_f32 v12, v224, v224
    v_and_or_b32 v12, v12, s{sHI}, v3
    s_mov_b64 exec, 0xffff
    buffer_store_dword v12, v2, {s(R_WS,4)}, s{sA} offen sc1
    s_mov_b64 exec, -1
    s_barrier
    ''')
    stamp(6)
    A.label('L_nomod')
    A(f'''
    s_cmp_lt_u32 s{sJ}, 25
    s_cbranch_scc1 L_f2w
    s_cmp_eq_u32 s{sF}, 55
    s_cbranch_scc1 L_fin
    s_cmp_eq_u32 s{sF}, 54
    s_cbranch_scc1 L_keys
    ''')
    A(f'''
    s_mov_b64 {s(R_G1,2)}, {s(P_WG,2)}
    s_mov_b64 {s(R_G2,2)}, {s(P_WU,2)}
    s_mov_b32 s{sE}, 0
    s_mov_b32 s{sH}, 0
    s_mov_b32 s{R_G1+2}, 2211840
    s_mov_b32 s{R_G2+2}, 2211840
    s_mov_b32 s{R_G2+3}, 0x20000
    v_lshrrev_b32 v2, 2, v{vL}
    v_bfe_u32 v3, v{vL}, 4, 1
    v_xor_b32 v3, v3, v{vL}
    v_xor_b32 v3, s{sH}, v3
    v_and_b32 v3, 3, v3
    v_mul_u32_u24 v12, 3456, v2
    s_lshl_b32 s{sA}, s{sF}, 6
    v_add_u32 v12, s{sA}, v12
    v_xor_b32 v2, 2, v3
    v_lshl_add_u32 v13, v2, 4, v12
    v_lshl_add_u32 v12, v3, 4, v12
    s_mul_i32 s{sH}, s{sW}, 10240
    s_add_u32 s{sC}, s{sH}, s{sE}
    s_mul_i32 s{sD_}, s{sW}, 552960
    ''')
    dma_loop(12, R_G1, 10, 55296, s(sC), s(sD_))
    A(f's_sub_u32 s{sC}, s{sH}, s{sE}')
    A(f's_add_u32 s{sC}, s{sC}, 40960')
    dma_loop(13, R_G2, 10, 55296, s(sC), s(sD_))
    A(f'''
    v_lshrrev_b32 v2, 1, v{vCC}
    v_and_b32 v3, 2, v{vCC}
    v_and_b32 v12, 1, v{vKH}
    v_xor_b32 v3, v3, v12
    v_xor_b32 v3, s{sW}, v3
    v_mul_u32_u24 v12, 40960, v2
    v_lshl_add_u32 v12, v{vRW}, 6, v12
    v_lshl_add_u32 v12, v3, 4, v12
    v_and_b32 v2, 1, v{vCC}
    v_lshl_add_u32 v12, v2, 3, v12
    ''')
    A.wait0(vm=True)
    A('s_barrier')
    for q in range(20):
        A(f'ds_read_b64_tr_b16 {a_(4*q,2)}, v12 offset:{2048*q}')
        A(f'ds_read_b64_tr_b16 {a_(4*q+2,2)}, v12 offset:{2048*q+512}')
    A('s_branch L_keys')

    A.label('L_f2w')
    srd(R_G1, P_WD, 2211840)
    A(f'''
    v_lshrrev_b32 v2, 1, v{vL}
    v_and_b32 v3, 1, v{vL}
    v_mul_u32_u24 v12, 1280, v2
    v_lshl_add_u32 v12, v3, 4, v12
    s_lshl_b32 s{sA}, s{sF}, 5
    v_add_u32 v12, s{sA}, v12
    v_mov_b32 v16, 0
    v_mov_b32 v17, 0
    v_mov_b32 v18, 0
    v_mov_b32 v19, 0
    ds_write_b128 v{vL16}, v[16:19] offset:{54*1024}
    ds_write_b128 v{vL16}, v[16:19] offset:{55*1024}
    s_cmp_eq_u32 s{sW}, 3
    s_cselect_b32 s{sE}, 12, 14
    s_and_b32 s{sH}, s{sF}, 3
    s_mul_i32 s{sH}, s{sH}, 3
    s_add_u32 s{sH}, s{sH}, 1
    s_sub_u32 s{sE}, s{sE}, s{sH}
    s_mul_i32 s{sKEY}, s{sW}, 14
    s_add_u32 s{sC}, s{sKEY}, s{sH}
    s_mul_i32 s{sD_}, s{sC}, 40960
    s_lshl_b32 s{sC}, s{sC}, 10
    ''')
    dma_loop(12, R_G1, s(sE), 40960, s(sC), s(sD_))
    A(f's_mul_i32 s{sD_}, s{sKEY}, 40960')
    A(f's_lshl_b32 s{sC}, s{sKEY}, 10')
    dma_loop(12, R_G1, s(sH), 40960, s(sC), s(sD_))
    A(f'''
    v_lshlrev_b32 v12, 5, v{vRW}
    v_lshl_add_u32 v12, v{vCC}, 3, v12
    v_add_u32 v12, s{sC}, v12
    v_lshrrev_b32 v13, 1, v{vL16}
    s_lshl_b32 s{sA}, s{sF}, 6
    s_add_u32 s{sA}, s{sA}, {W_MOD+5*2560}
    s_mov_b32 s{sB}, {W_MOD+3*2560}
    ''')
    for i in range(3):
        A(f'buffer_load_dwordx2 {v(32+2*i,2)}, v13, {s(R_WR,4)}, 0 offen offset:{512*i}')
    A.wait0(vm=True)
    for q in range(14):
        A(f'ds_read_b64_tr_b16 {a_(4*q,2)}, v12 offset:{1024*q}')
        A(f'ds_read_b64_tr_b16 {a_(4*q+2,2)}, v12 offset:{1024*q+256}')
    lab = spin_begin('gb')
    for i in range(3):
        A(f'buffer_load_dwordx4 {v(16+4*i,4)}, v{vL16}, {s(R_WS,4)}, s{sB} offen offset:{1024*i} sc1')
    A(f'buffer_load_dword v50, v15, {s(R_WS,4)}, s{sA} offen sc1')
    A.wait0(vm=True)
    tagcheck(2, list(range(16, 28)) + [50])
    spin_end(lab)
    for i in range(12):
        A(f'v_and_b32 v{16+i}, s{sHI}, v{16+i}')
    A(f'v_and_b32 v50, s{sHI}, v50')
    for i in range(6):
        unpack(52 + 2 * i, 32 + i)
    A('v_pk_mul_f32 v[28:29], v[16:17], v[52:53]')
    for i in range(1, 6):
        A(f'v_pk_fma_f32 v[28:29], {v(16+2*i,2)}, {v(52+2*i,2)}, v[28:29]')
    A('v_add_f32 v51, v28, v29')
    red32([51], 28)
    A('v_mov_b32 v28, v51')
    A.nop(2)
    A('v_permlane32_swap_b32 v28, v51')
    A('v_add_f32 v51, v28, v51')

    A.wait0(lg=True)
    stamp(7)
    A(f'v_mov_b32 v12, {W_FWD}')
    A('s_mov_b64 exec, 1')
    lab = spin_begin('fwd')
    A(f'buffer_load_dwordx2 v[16:17], v12, {s(R_WS,4)}, 0 offen sc1')
    A.wait0(vm=True)
    A(f'v_cmp_ne_u32 vcc, s{sT}, v17')
    spin_end(lab)
    A(f'v_readfirstlane_b32 s{sKEY}, v16')
    A('s_mov_b64 exec, -1')
    stamp(12)
    A('s_branch L_f2')

    A.label('L_keys')
    A(f"""
    v_min_u32 v13, 39, v{vL}
    s_mul_i32 s{sA}, s{sW}, 40
    v_add_lshl_u32 v13, v13, s{sA}, 7
    s_mov_b32 s{sB}, {W_KEYS}
    v_mov_b32 v11, {L_SCR}
    v_mov_b32 v2, 0
    ds_write_b32 v11, v2
    s_mov_b32 s{sC}, 0x10001
    s_mov_b32 s{sC+1}, 0x10001
    v_and_b32 v12, 511, v{vL16}
    """)
    A.wait0(lg=True)
    A('s_barrier')
    stamp(7)
    lab = spin_begin('key')
    A(f'buffer_load_dwordx2 v[16:17], v13, {s(R_WS,4)}, s{sB} offen sc1')
    A.wait0(vm=True)
    A(f'v_cmp_ne_u32 vcc, s{sT}, v17')
    A(f'v_max_u32_dpp v16, v16, v16 row_ror:8 row_mask:0xf bank_mask:0xf')
    spin_end(lab)
    for sh in (4, 2, 1):
        A.nop(1 if sh == 4 else 2)
        A(f'v_max_u32_dpp v16, v16, v16 row_ror:{sh} row_mask:0xf bank_mask:0xf')
    A(f"""
    s_mov_b64 exec, {s(sC,2)}
    ds_max_u32 v11, v16
    s_mov_b64 exec, -1
    s_waitcnt lgkmcnt(0)
    s_barrier
    ds_read_b32 v16, v11
    s_cmp_eq_u32 s{sF}, 54
    s_waitcnt lgkmcnt(0)
    s_cbranch_scc1 L_fwd
    v_readfirstlane_b32 s{sKEY}, v16
    s_bfe_u32 s{sH}, s{sKEY}, 0x80004
    s_min_u32 s{sH}, s{sH}, 159
    s_mul_i32 s{sE}, s{sH}, 2560
    """)
    stamp(12)

    A(f's_add_u32 s{sE}, s{sE}, {W_ROWS}')
    lab = spin_begin('row')
    A(f'buffer_load_dwordx4 v[16:19], v{vL16}, {s(R_WS,4)}, s{sE} offen sc1')
    A(f'buffer_load_dwordx4 v[20:23], v{vL16}, {s(R_WS,4)}, s{sE} offen offset:1024 sc1')
    A(f'buffer_load_dwordx4 v[24:27], v12, {s(R_WS,4)}, s{sE} offen offset:2048 sc1')
    A.wait0(vm=True)
    for i in range(3):
        A(f'v_perm_b32 v{28+2*i}, v{17+4*i}, v{16+4*i}, s{sPHI}')
        A(f'v_perm_b32 v{29+2*i}, v{19+4*i}, v{18+4*i}, s{sPHI}')
        A(f'ds_write_b64 v{vXW if i < 2 else vXW2}, {v(28+2*i,2)} offset:{512*i}')
    tagcheck(2, [16, 19, 20, 23, 24, 27])
    spin_end(lab)

    def gemv(n):
        A.wait0(lg=True)
        A.lg_n = 0
        h = []
        for q in range(n):
            h.append(A.lg(f'ds_read_b128 {v(64+4*q,4)}, v{vXR} offset:{64*q}'))
            if q >= 8:
                A.wait(lg=h[q - 8])
                A(f'v_mfma_f32_16x16x32_bf16 v[40:43], {v(64+4*(q-8),4)}, {a_(4*(q-8),4)}, {"0" if q == 8 else "v[40:43]"}')
        for q in range(n - 8, n):
            A.wait(lg=h[q])
            A(f'v_mfma_f32_16x16x32_bf16 v[40:43], {v(64+4*q,4)}, {a_(4*q,4)}, v[40:43]')

    stamp(13)
    gemv(20)
    A(f'''
    s_lshl_b32 s{sA}, s{sF}, 9
    s_lshl_b32 s{sB}, s{sW}, 7
    s_add_u32 s{sA}, s{sA}, s{sB}
    s_add_u32 s{sA}, s{sA}, {W_HID}
    v_lshlrev_b32 v2, 2, v{vL}
    v_mov_b32 v3, s{sTAG}
    s_nop 1
    v_mul_f32 v44, {LOG2E_NEG}, v40
    v_exp_f32 v44, v44
    v_mul_f32_dpp v45, v41, v40 row_ror:8 row_mask:0xf bank_mask:0xf
    v_add_f32 v44, 1.0, v44
    v_rcp_f32 v44, v44
    s_mov_b32 exec_hi, 0
    v_mul_f32 v44, v44, v45
    v_cvt_pk_bf16_f32 v44, v44, v44
    v_and_or_b32 v44, v44, s{sHI}, v3
    buffer_store_dword v44, v2, {s(R_WS,4)}, s{sA} offen sc1
    s_mov_b64 exec, -1
    ''')
    stamp(14)
    A('s_branch L_fin')

    A.label('L_fwd')
    A(f'''
    s_cmp_lg_u32 s{sW}, 0
    s_cbranch_scc1 L_fin
    v_mov_b32 v12, {W_FWD}
    s_mov_b64 exec, 1
    buffer_store_dwordx2 v[16:17], v12, {s(R_WS,4)}, 0 offen sc1
    s_mov_b64 exec, -1
    s_branch L_fin
    ''')
    A.label('L_f2')
    A(f'''
    s_bfe_u32 s{sH}, s{sKEY}, 0x80004
    s_min_u32 s{sH}, s{sH}, 159
    s_mul_i32 s{sE}, s{sH}, 2560
    s_lshl_b32 s{sA}, s{sF}, 6
    s_add_u32 s{sE}, s{sE}, s{sA}
    s_add_u32 s{sE}, s{sE}, {W_BASE}
    s_mul_i32 s{sD_}, s{sW}, {56*128}
    s_add_u32 s{sD_}, s{sD_}, {W_HID}
    s_cmp_eq_u32 s{sW}, 3
    s_cselect_b32 s{sA}, 31, 47
    v_min_u32 v12, s{sA}, v{vL}
    v_lshrrev_b32 v2, 1, v12
    v_and_b32 v12, 1, v12
    v_lshlrev_b32 v12, 4, v12
    v_lshl_add_u32 v12, v2, 7, v12
    v_add_u32 v12, 4096, v12
    v_lshrrev_b32 v2, 1, v{vL}
    v_and_b32 v{vL16}, 16, v{vL16}
    v_lshl_add_u32 v{vL16}, v2, 7, v{vL16}
    s_ashr_i32 s{sA}, s{sKEY}, 31
    s_not_b32 s{sA}, s{sA}
    s_or_b32 s{sA}, s{sA}, 0x80000000
    s_xor_b32 s{sA}, s{sA}, s{sKEY}
    s_and_b32 s{sA}, s{sA}, 0xfffff000
    v_add_f32 v51, s{sA}, v51
    v_mul_f32 v51, {LOG2E_NEG}, v51
    v_exp_f32 v51, v51
    s_mul_i32 s{sA}, s{sH}, 3277
    v_add_f32 v51, 1.0, v51
    v_rcp_f32 v51, v51
    s_lshr_b32 s{sA}, s{sA}, 16
    v_mul_f32 v51, v51, v50
    s_mul_i32 s{sB}, s{sA}, 20
    s_sub_u32 s{sB}, s{sH}, s{sB}
    s_sub_u32 s{sC}, s{sB}, 12
    s_lshr_b32 s{sC}, s{sC}, 1
    s_add_u32 s{sC}, s{sC}, 12
    s_cmp_lt_u32 s{sB}, 12
    s_cselect_b32 s{sB}, s{sB}, s{sC}
    s_lshl_b32 s{sB}, s{sB}, 3
    s_add_u32 s{sA}, s{sA}, s{sB}
    s_lshl_b32 s{sA}, s{sA}, 4
    s_and_b32 s{sB}, s{sKEY}, 15
    s_add_u32 s{sA}, s{sA}, s{sB}
    s_mul_i32 s{sA}, s{sA}, 1280
    s_lshl_b32 s{sB}, s{sF}, 5
    s_add_u32 s{sH}, s{sA}, s{sB}
    v_lshlrev_b32 v14, 1, v14
    s_lshl_b32 s{sA}, s{sW}, 6
    s_add_u32 s{sA}, s{sA}, {L_SCR}
    v_add_u32 v11, s{sA}, v15
    v_add_u32 v13, {L_SCR}, v15
    ''')
    lab = spin_begin('base')
    A(f'buffer_load_dword v52, v15, {s(R_WS,4)}, s{sE} offen sc1')
    A.wait0(vm=True)
    A(f'v_xor_b32 v2, s{sTAG}, v52')
    A('v_and_b32 v2, 0xff, v2')
    A('v_cmp_ne_u32 vcc, 0, v2')
    spin_end(lab)
    stamp(8)
    lab = spin_begin('hid')
    A(f'buffer_load_dwordx4 v[16:19], v{vL16}, {s(R_WS,4)}, s{sD_} offen sc1')
    A(f'buffer_load_dwordx4 v[20:23], v12, {s(R_WS,4)}, s{sD_} offen sc1')
    A.wait0(vm=True)
    for i in range(2):
        A(f'v_perm_b32 v{28+2*i}, v{17+4*i}, v{16+4*i}, s{sPHI}')
        A(f'v_perm_b32 v{29+2*i}, v{19+4*i}, v{18+4*i}, s{sPHI}')
        A(f'ds_write_b64 v{vXW}, {v(28+2*i,2)} offset:{512*i}')
    tagcheck(2, list(range(16, 24)))
    spin_end(lab)
    stamp(13)
    gemv(14)
    A.nop(8)
    A('ds_write_b32 v11, v40')
    A.wait0(lg=True)
    A(f'''
    s_barrier
    s_cmp_lg_u32 s{sW}, 0
    s_cbranch_scc1 L_f2_other
    ds_read2_b32 v[44:45], v13 offset0:0 offset1:16
    ds_read2_b32 v[46:47], v13 offset0:32 offset1:48
    v_and_b32 v52, 0xffffff00, v52
    s_waitcnt lgkmcnt(0)
    v_add_f32 v44, v44, v45
    v_add_f32 v46, v46, v47
    v_add_f32 v44, v44, v46
    v_fma_f32 v44, v44, v51, v52
    v_cvt_pk_bf16_f32 v44, v44, v44
    s_mov_b64 exec, 0xffff
    buffer_store_short v44, v14, {s(R_OUT,4)}, s{sH} offen sc1
    s_mov_b64 exec, -1
    ''')
    stamp(14)
    A('s_branch L_fin')
    A.label('L_f2_other')
    A(f'''
    s_lshl_b32 s{sA}, s{sF}, 2
    s_add_u32 s{sA}, s{sA}, s{sW}
    s_cmp_lg_u32 s{sA}, 1
    s_cbranch_scc1 L_fin
    v_mov_b32 v3, s{sT}
    s_mov_b64 exec, 1
    buffer_store_dword v3, v{vL}, {s(R_WS,4)}, 0 offen offset:{W_EPOCH} sc1
    s_mov_b64 exec, -1
    ''')
    A.label('L_fin')
    if opt.get('leak') is not None:
        A.wait0(vm=True)
        stamp(15)
        A.nop(2)
        A(f'''
        v_readlane_b32 s{sA}, v{vSTAMP}, 0
        v_readlane_b32 s{sB}, v{vSTAMP}, {opt["leak"]}
        s_cmp_eq_u32 s{sB}, 0
        s_cselect_b32 s{sB}, s{sA}, s{sB}
        s_sub_u32 s{sB}, s{sB}, s{sA}
        s_min_u32 s{sB}, s{sB}, 10000
        s_mul_i32 s{sB}, s{sB}, 10
        s_add_u32 s{sB}, s{sB}, 6000
        ''')
        A.label('L_leak')
        A(f's_memrealtime {s(sST,2)}')
        A.wait0(lg=True)
        A(f's_sub_u32 s{sC}, s{sST}, s{sA}')
        A(f's_cmp_lt_u32 s{sC}, s{sB}')
        A('s_cbranch_scc1 L_leak')
    elif stamps:
        A.wait0(vm=True)
        stamp(15)
        A(f'''
        s_lshl_b32 s{sA}, s2, 2
        s_add_u32 s{sA}, s{sA}, s{sW}
        s_lshl_b32 s{sA}, s{sA}, 8
        s_add_u32 s{sA}, s{sA}, {W_STAMP}
        v_lshlrev_b32 v2, 2, v{vL}
        buffer_store_dword v{vSTAMP}, v2, {s(R_WS,4)}, s{sA} offen
        ''')
    A.label('L_end')
    A('s_endpgm')
    return A


def sizes_of(lines):
    import subprocess, tempfile, re, os
    body = [ln for ln in lines]
    names = set(ln[:-1] for ln in lines if ln.endswith(':'))
    extra = [f'L_pad{i}:' for i in range(1, 5) if f'L_pad{i}' not in names]
    src = '.amdgcn_target "amdgcn-amd-amdhsa--gfx950"\n.text\n' + '\n'.join(l for l in body if not l.startswith('.p2align')) + '\n' + '\n'.join(extra) + '\n'
    with tempfile.TemporaryDirectory() as d:
        open(d + '/a.s', 'w').write(src)
        subprocess.run(['clang', '-x', 'assembler', '-target', 'amdgcn-amd-amdhsa', '-mcpu=gfx950', '-c', d + '/a.s', '-o', d + '/a.o'], check=True)
        out = subprocess.run(['llvm-objdump', '-d', '--mcpu=gfx950', d + '/a.o'], capture_output=True, text=True).stdout
    sz = [4 * len(m.group(1).split()) for m in re.finditer(r'// [0-9A-F]+: ((?:[0-9A-F]{8} ?)+)', out)]
    it = iter(sz)
    return [0 if (ln.endswith(':') or ln.startswith('.')) else next(it) for ln in lines]


def promote(ln):
    op = ln.split()[0]
    if op.startswith('v_') and not op.startswith(('v_readfirstlane', 'v_permlane', 'v_cndmask', 'v_accvgpr', 'v_nop')) and not op.endswith('_e64'):
        return op + '_e64' + ln[len(op):]
    return None


def layout(lines, opt):
    sz = sizes_of(lines)
    start = lines.index('L_body:')
    out = lines[:start]
    pos, page, risky, pads = 0, 0, False, []
    last4 = None
    for i in range(start, len(lines)):
        ln = lines[i]
        if opt.get('pads', 1) and pos >= 4096 * (page + 1) and not risky and sz[i]:
            page += 1
            pads.append(len(out))
            out.append(f'L_pad{page}:')
            out.append(None)
            pos += 4
            last4 = None
        if opt.get('align', 1) and sz[i] == 8 and pos % 8 == 4 and last4 is not None:
            run, k = 0, i
            while k < len(lines) and (sz[k] == 8 or sz[k] == 0):
                run += sz[k] == 8 and not lines[k].startswith('v_mfma')
                k += 1
            if run >= 4:
                out[last4] = promote(out[last4])
                pos += 4
        if sz[i] == 4:
            last4 = len(out) if promote(ln) else (last4 if last4 is not None and len(out) - last4 < 4 else None)
        elif sz[i] == 8:
            last4 = None
        out.append(ln)
        pos += sz[i]
        if ln.startswith(('s_mov_b64 exec', 's_mov_b32 exec', 's_cselect_b32 exec')):
            risky = ln.split(',')[1].strip().startswith('s') or ln.endswith('exec, 0')
    n = len(pads)
    for k, p in enumerate(pads):
        out[p + 1] = f's_cbranch_execz L_pad{k+5}' if k + 5 <= n else 's_cbranch_execz L_padback'
    return out


def build(opt):
    A = gen(opt)
    A.lines = layout(A.lines, opt)
    cases = [(b, w) for b in (0, 77, 100, 159, 160, 161, 165, 199, 200, 208, 209, 230, 247, 255, 256) for w in range(4)]
    errs = check(A.lines, cases, sW, (sSPIN,))
    for e in errs[:30]:
        print('CHECK:', e, file=sys.stderr)
    ref = open(f'cdna_kernels/{NAME}.s.ref').read().split('\n')
    head = [ln for ln in ref if ln.startswith(';') and '@launch' not in ln and 'Override' not in ln and 'grid=ceil' not in ln]
    k = NAME + '_kernel'
    txt = '\n'.join(head) + f'''
; @launch grid=(256,1,1) block=(256,1,1) lds={L_TOTAL}
.amdgcn_target "amdgcn-amd-amdhsa--gfx950"
.text
.globl {k}
.p2align 12
.p2align 8
.type {k},@function
{k}:
''' + A.text() + f'''.section .rodata,"a"
.p2align 6
.amdhsa_kernel {k}
  .amdhsa_next_free_vgpr 512
  .amdhsa_next_free_sgpr 102
  .amdhsa_accum_offset 256
  .amdhsa_group_segment_fixed_size 0
  .amdhsa_kernarg_size 128
  .amdhsa_user_sgpr_count 2
  .amdhsa_user_sgpr_kernarg_segment_ptr 1
  .amdhsa_system_sgpr_workgroup_id_x 1
  .amdhsa_float_denorm_mode_32 3
.end_amdhsa_kernel
'''
    return txt, errs


if __name__ == '__main__':
    out = sys.argv[1]
    opt = {}
    for a in sys.argv[2:]:
        k_, val = a.split('=')
        opt[k_] = int(val)
    txt, errs = build(opt)
    open(out, 'w').write(txt)
    sys.exit(1 if errs else 0)
```
